```python
import torch

def _softmax(x, axis=-1):
    return torch.softmax(x, dim=axis)

def _gelu(x):
    return torch.nn.functional.gelu(x, approximate='tanh')

def _silu(x):
    return torch.nn.functional.silu(x)

def _sigmoid(x):
    return torch.sigmoid(x)

def _layernorm(x, axis=-1, eps=1e-05):
    m = x.mean(dim=axis, keepdim=True)
    v = x.var(dim=axis, keepdim=True, unbiased=False)
    return (x - m) / torch.sqrt(v + eps)

def _scatter_add(tgt, idx, src, axis=0):
    return tgt.clone().index_add_(axis, idx, src)

def _segment_sum(src, seg, n):
    out = torch.zeros((n,) + src.shape[1:], dtype=src.dtype)
    return out.index_add_(0, seg, src)

def _pad(x, pw):
    flat = tuple((v for pair in reversed(pw) for v in pair))
    return torch.nn.functional.pad(x, flat)
kernel_name = 'adaLN_cond__ssm_conv_h3__glu_gated_geglu__prompt'

def setup_inputs():

    _w = lambda a: (lambda t: t.to(torch.bfloat16) if t.is_floating_point() else t)(torch.as_tensor(a))

    def _A_setup():
        B, S, D = (1, 2048, 576)
        ks = 4
        return {'q': _w((lambda *s: torch.randn(*s, dtype=torch.bfloat16) * 0.05)(B, S, D)), 'k': _w((lambda *s: torch.randn(*s, dtype=torch.bfloat16) * 0.8)(B, S, D)), 'v': _w((lambda *s: torch.randn(*s, dtype=torch.bfloat16) * 0.8)(B, S, D)), 'shift_k': _w((lambda *s: torch.randn(*s, dtype=torch.bfloat16) * 0.8)(D, ks) * 0.5), 'ssm_k': _w((lambda *s: torch.randn(*s, dtype=torch.bfloat16) * 0.8)(D, S) * (1.0 / S ** 0.5)), 'ssm_D': _w((lambda *s: torch.randn(*s, dtype=torch.bfloat16) * 0.8)(D))}
    _A_in = _A_setup()

    def _B_setup():
        B, S, Dm, Df = (1, 2048, 576, 4608)
        return {'x': _w((lambda *s: torch.randn(*s, dtype=torch.bfloat16) * 0.05)(B, S, Dm)), 'w_gate': _w((lambda *s: torch.randn(*s, dtype=torch.bfloat16) * 1.6)(Dm, Df) * Dm ** (-0.5)), 'w_up': _w((lambda *s: torch.randn(*s, dtype=torch.bfloat16) * 1.6)(Dm, Df) * Dm ** (-0.5)), 'w_down': _w((lambda *s: torch.randn(*s, dtype=torch.bfloat16) * 1.6)(Df, Dm) * Df ** (-0.5))}
    _B_in = _B_setup()
    return {'A_q': _A_in['q'], 'A_k': _A_in['k'], 'A_v': _A_in['v'], 'A_shift_k': _A_in['shift_k'], 'A_ssm_k': _A_in['ssm_k'], 'A_ssm_D': _A_in['ssm_D'], 'B_x': _B_in['x'], 'B_w_gate': _B_in['w_gate'], 'B_w_up': _B_in['w_up'], 'B_w_down': _B_in['w_down'], 'c': _w((lambda *s: torch.randn(*s, dtype=torch.bfloat16) * 0.1)(1, 576) * 8.0), 'w_mod': _w((lambda *s: torch.randn(*s, dtype=torch.bfloat16) * 0.1)(576, 6 * 576) * 576 ** (-0.5) * 8.0)}

def reference(A_q, A_k, A_v, A_shift_k, A_ssm_k, A_ssm_D, B_x, B_w_gate, B_w_up, B_w_down, c, w_mod):

    def _A_ref(q, k, v, shift_k, ssm_k, ssm_D):
        B, S, D = q.shape
        ks = shift_k.shape[-1]
        k_pad = _pad(k, ((0, 0), (ks - 1, 0), (0, 0)))
        k_shift = torch.zeros_like(k)
        for t in range(ks):
            k_shift = k_shift + k_pad[:, t:t + S, :] * shift_k[:, ks - 1 - t][None, None, :]
        kv = k_shift * v
        L = 2 * S
        kv_pad = _pad(kv, ((0, 0), (0, S), (0, 0)))
        kf_pad = _pad(ssm_k, ((0, 0), (0, S)))
        kv_f = (lambda x, axes=(-2, -1): torch.fft.rfft2(x.float(), dim=axes))(kv_pad[:, None, :, :], axes=(1, 2))
        kf_f = (lambda x, axes=(-2, -1): torch.fft.rfft2(x.float(), dim=axes))(kf_pad[:, None, :], axes=(1, 2))
        kf_f = (lambda x, *d: x.permute(*d))(kf_f, 1, 2, 0)
        y_f = kv_f * kf_f[None, :, :, :]
        y = (lambda x, s, axes=(-2, -1): torch.fft.irfft2(x, s=s, dim=axes).to(torch.bfloat16))(y_f, (1, L), axes=(1, 2))[:, 0, :S, :]
        y = y + kv * ssm_D[None, None, :]
        return q * y

    def _B_ref(x, w_gate, w_up, w_down):
        g = torch.einsum('bsd,df->bsf', x, w_gate)
        u = torch.einsum('bsd,df->bsf', x, w_up)
        h = _gelu(g) * u
        return torch.einsum('bsf,fd->bsd', h, w_down)
    x = A_q
    mod = (_silu(c) @ w_mod).reshape(c.shape[0], 6, 1, -1)
    sa, ca, ga, sb, cb, gb = (mod[:, 0].clone(), mod[:, 1].clone(), mod[:, 2].clone(), mod[:, 3].clone(), mod[:, 4].clone(), mod[:, 5].clone())
    h = _layernorm(x, axis=-1) * (1 + ca) + sa
    x = x + ga * _A_ref(h, A_k, A_v, A_shift_k, A_ssm_k, A_ssm_D)
    h = _layernorm(x, axis=-1) * (1 + cb) + sb
    x = x + gb * _B_ref(h, B_w_gate, B_w_up, B_w_down)
    return x
```

```python
KN = "adaLN_cond__ssm_conv_h3__glu_gated_geglu__prompt_kernel"
KA = dict(q=0,k=8,v=16,shift=24,ssmk=32,ssmD=40,bx=48,wg=56,wu=64,wd=72,c=80,wmod=88,out=96,dbg=104,ws=112)
SZ = dict(q=2359296,k=2359296,v=2359296,shift=4608,ssmk=2359296,ssmD=1152,bx=2359296,wg=5308416,wu=5308416,wd=5308416,c=1152,wmod=3981312,out=2359296,dbg=256,ws=268435456)

class A:
    def __init__(self):
        self.l = []
        self.uid = 0
    def __call__(self, s=""):
        for line in s.split("\n"):
            self.l.append("    " + line.strip() if line.strip() and not line.strip().endswith(":") else line.strip())
    def label(self, name):
        self.l.append(name + ":")
    def newlabel(self, p="L"):
        self.uid += 1
        return f"{p}_{self.uid}"
    def text(self):
        return "\n".join(self.l) + "\n"
    def srd(self, s, base, size):
        self(f"s_mov_b32 s{s}, s{base}")
        self(f"s_and_b32 s{s+1}, s{base+1}, 0xffff")
        self(f"s_mov_b32 s{s+2}, {size}")
        self(f"s_mov_b32 s{s+3}, 0x00020000")

def kernel_begin(a, name):
    a.l.append(f".globl {name}")
    a.l.append(".p2align 8")
    a.l.append(f".type {name},@function")
    a.l.append(f"{name}:")

def kernel_desc(name, vgpr, accum, sgpr=102, wgy=False):
    s = f""".amdhsa_kernel {name}
  .amdhsa_next_free_vgpr {vgpr}
  .amdhsa_next_free_sgpr {sgpr}
  .amdhsa_accum_offset {accum}
  .amdhsa_group_segment_fixed_size 0
  .amdhsa_kernarg_size 120
  .amdhsa_user_sgpr_count 2
  .amdhsa_user_sgpr_kernarg_segment_ptr 1
  .amdhsa_system_sgpr_workgroup_id_x 1
"""
    if wgy: s += "  .amdhsa_system_sgpr_workgroup_id_y 1\n"
    s += "  .amdhsa_float_denorm_mode_32 3\n"
    s += ".end_amdhsa_kernel\n"
    return s

def finish(header_lines, body, descs):
    s = "".join(f"; {h}\n" for h in header_lines)
    s += '.amdgcn_target "amdgcn-amd-amdhsa--gfx950"\n.text\n'
    s += body
    s += '.section .rodata,"a"\n'
    for d in descs:
        s += ".p2align 6\n" + d
    return s
```

```python
import re
TRANS = ("v_exp_f32","v_log_f32","v_rcp_f32","v_rsq_f32","v_sqrt_f32","v_sin_f32","v_cos_f32","v_rcp_iflag_f32")
def regs(tok):
    tok = tok.strip()
    tok = tok.lstrip("-")
    m = re.fullmatch(r"(?:abs\()?\|?([vas])(\d+)\|?\)?", tok)
    if m: return {(m.group(1), int(m.group(2)))}
    m = re.fullmatch(r"([vas])\[(\d+):(\d+)\]", tok)
    if m: return {(m.group(1), i) for i in range(int(m.group(2)), int(m.group(3))+1)}
    if tok == "vcc": return {("s","vcc")}
    if tok in ("vcc_lo","vcc_hi"): return {("s","vcc")}
    if tok == "m0": return {("s","m0")}
    if tok in ("exec","exec_lo","exec_hi"): return {("s","exec")}
    return set()
class I:
    pass
def parse(line):
    s = line.split(";")[0].strip()
    if not s or s.endswith(":") or s.startswith("."): return None
    parts = s.split(None, 1)
    op = parts[0]
    rest = parts[1] if len(parts) > 1 else ""
    ops = [x.strip() for x in re.split(r",(?![^\[]*\])", rest)] if rest else []
    mods = ""
    if ops:
        l = ops[-1].split(None, 1)
        ops[-1] = l[0]
        if len(l) > 1: mods = l[1]
    i = I(); i.op = op; i.ops = ops; i.mods = mods; i.line = line
    i.W = set(); i.R = set(); i.cls = "other"; i.C = set(); i.AB = set(); i.data=set(); i.n=1
    R = [regs(o) for o in ops]
    if op == "s_nop": i.n = int(ops[0], 0) + 1
    elif op.startswith("v_mfma"):
        i.cls = "mfma"; i.W = R[0]; i.AB = R[1] | R[2]; i.C = R[3]; i.R = i.AB | i.C
        i.passes = 8 if "32x32" in op else 4
    elif op.startswith("v_"):
        i.cls = "valu"
        base = re.sub(r"_e(32|64)$|_dpp$|_sdwa$", "", op)
        i.trans = base in TRANS
        i.dpp = ("row_" in mods or "quad_perm" in mods or "wave_" in mods or "_dpp" in op)
        i.opsel = ("op_sel" in mods and not base.startswith("v_pk_")) or "dst_sel" in mods
        nd = 1
        if base.startswith(("v_add_co","v_sub_co","v_addc_co","v_subb_co","v_subrev_co","v_div_scale","v_mad_u64","v_mad_i64")): nd = 2
        for k in range(nd): i.W |= R[k]
        for k in range(nd, len(R)): i.R |= R[k]
        if base.startswith(("v_fmac","v_mac","v_pk_fmac","v_dot2c","v_writelane","v_fmaak","v_fmamk")) or i.dpp or "dst_unused:UNUSED_PRESERVE" in mods: i.R |= R[0]
        if base.startswith("v_permlane") and "swap" in base: i.W |= R[1]; i.R |= R[0]
        if base.startswith("v_swap"): i.W |= R[1]; i.R |= R[0]
        i.perm = base.startswith("v_permlane")
        i.rdlane = base.startswith(("v_readlane","v_readfirstlane"))
        i.lanesel = regs(ops[2]) if base.startswith(("v_readlane","v_writelane")) else set()
        if base.startswith("v_cmpx"): i.W |= {("s","exec")}
    elif op.startswith(("buffer_","global_")):
        i.cls = "vmem"
        lds = "lds" in mods.split() or "_lds_" in op
        i.lds = lds
        if "load" in op and not lds:
            i.W = R[0]
            for r in R[1:]: i.R |= r
        elif "atomic" in op:
            for r in R: i.R |= r
            if "sc0" in mods.split(): i.W = R[0]
        else:
            for r in R: i.R |= r
            if "store" in op:
                d = R[0] if op.startswith("buffer_") else R[1]
                i.data = d if ("x3" in op or "x4" in op) else set()
        if lds: i.R |= {("s","m0")}
    elif op.startswith("ds_"):
        i.cls = "ds"
        if op.startswith(("ds_read","ds_bpermute","ds_permute","ds_swizzle")) or "_rtn" in op:
            i.W = R[0]
            for r in R[1:]: i.R |= r
        else:
            for r in R: i.R |= r
    elif op.startswith("s_"):
        i.cls = "salu"
        if op.startswith(("s_waitcnt","s_barrier","s_branch","s_cbranch","s_endpgm","s_setprio","s_sleep")): i.cls = "other"
        elif op.startswith("s_cmp") or op.startswith("s_bitcmp"):
            for r in R: i.R |= r
        else:
            i.W = R[0] if R else set()
            for r in R[1:]: i.R |= r
            if "saveexec" in op: i.W |= {("s","exec")}
    return i
def isv(s): return {x for x in s if x[0] in "va"}
def iss(s): return {x for x in s if x[0] == "s"}
def need(p, c):
    n = 0
    if p.cls == "valu":
        pv = isv(p.W); ps = iss(p.W)
        if c.cls == "mfma" and pv & c.R: n = max(n, 2)
        if c.cls == "valu":
            if p.trans and not c.trans and pv & c.R: n = max(n, 1)
            if p.trans and c.trans and pv & c.R: n = max(n, 1)
            if p.opsel and pv & (c.R | c.W): n = max(n, 1)
            if c.rdlane and pv & c.R: n = max(n, 1)
            if (c.dpp or c.perm) and pv & c.R: n = max(n, 2)
            if ps & c.lanesel: n = max(n, 4)
            if ps & c.R: n = max(n, 2)
            if ("s","exec") in ps: n = max(n, 5)
        if c.cls == "vmem" and ps & c.R: n = max(n, 5)
        if c.cls == "mfma" and ("s","exec") in ps: n = max(n, 4)
        if c.cls == "salu" and ps & c.R: n = max(n, 1)
    if p.cls == "mfma":
        a = p.passes
        if c.cls == "mfma":
            if p.W & c.AB: n = max(n, a + 4)
            if p.W & c.C and not (p.W == c.C and c.passes == a): n = max(n, a + 2)
            if p.W & c.W and not (p.W == c.C and c.passes == a): n = max(n, a + 2)
        elif c.cls in ("valu",):
            if p.W & (c.R | c.W): n = max(n, a + 4)
            if p.C & c.W: n = max(n, a - 1)
        elif c.cls in ("vmem","ds"):
            if p.W & (c.R | c.W): n = max(n, a + 4)
            if p.C & c.W: n = max(n, a - 1)
    if p.cls == "vmem" and p.data:
        if c.cls == "valu" and p.data & c.W: n = max(n, 2)
        elif p.data & c.W: n = max(n, 1)
    if p.cls == "salu" and ("s","m0") in p.W and (c.cls == "vmem" and getattr(c,"lds",False) or (c.cls=="valu" and ("s","m0") in c.R)): n = max(n, 1)
    return n
def fix(lines, verbose=None):
    out = []; hists = [[]]; nins = 0
    labels = {}
    pend = {}
    for idx, line in enumerate(lines):
        s = line.strip()
        if s.endswith(":"): labels[s[:-1]] = idx
    def req(hist, i, d0=0):
        dist = d0; pad = 0; who=None
        for p in reversed(hist):
            n = need(p, i)
            if n - dist > pad: pad = n - dist; who=p
            dist += p.n
            if dist >= 20: break
        return pad, who
    for idx, line in enumerate(lines):
        s = line.strip()
        if s.endswith(":") and s[:-1] in pend:
            hists += pend.pop(s[:-1])
        i = parse(line)
        if i is None:
            out.append(line); continue
        pad = max(req(h, i)[0] for h in hists) if hists else 0
        if pad:
            nop = parse(f"s_nop {pad-1}")
            out.append(f"    s_nop {pad-1} ; hz"); nins += 1
            for h in hists: h.append(nop)
            if verbose is not None: verbose.append((idx, pad, line.strip()))
        out.append(line)
        for h in hists: h.append(i)
        if i.op.startswith(("s_cbranch","s_branch")) and i.ops and i.ops[0] in labels:
            if labels[i.ops[0]] < idx:
                j = labels[i.ops[0]]; d = 0
                while d < 20 and j < idx:
                    h0 = parse(lines[j]); j += 1
                    if h0 is None: continue
                    for h in hists:
                        pad, who = req(h, h0, d)
                        if pad: raise Exception(f"loop back-edge hazard: {who.line.strip()} -> {h0.line.strip()} short by {pad}")
                    d += h0.n
            else:
                pend.setdefault(i.ops[0], []).extend([list(h[-24:]) for h in hists])
        if i.op in ("s_branch","s_endpgm"): hists = [[]]
        hists = [h[-24:] for h in hists]
        uniq = {}
        for h in hists: uniq[tuple(id(x) for x in h)] = h
        hists = list(uniq.values())
    return out, nins
```

```python
from asmlib import *
from k_pre import XT,YO,MODP,H2,X1,HH,PART,TSZ,srd_ws
SLAB=36864
HHSZ=128*144*1024
import struct
def fbits(x): return "0x%08x"%struct.unpack("<I",struct.pack("<f",x))[0]
C0=-2*1.4426950408889634*0.7978845608028654
C1=C0*0.044715

def interleave(a, mf, prio, bulk, budget=2):
    tot=sum(c for _,c in bulk); done=0; n=len(mf)
    prio=list(prio); bulk=list(bulk)
    cap=[budget-(1 if i<len(prio) else 0) for i in range(n)]
    ctot=sum(cap); acc=0
    for i,m in enumerate(mf):
        a(m)
        if prio: a(prio.pop(0))
        acc+=cap[i]
        while bulk and (done+bulk[0][1]*0.5) <= tot*acc/max(ctot,1):
            t,c=bulk.pop(0); a(t); done+=c
    for p in prio: a(p)
    for t,c in bulk: a(t)

K3_LDS=4*SLAB
def k3(a, name):
    VA=2; VD0=10; VD=11; VH=12; VL=13; VC1=14; TMP=16; AF=32; ACC=64; HP=128
    def breg(sl,ks):
        i=(sl*18+ks)*4
        return f"a[{i}:{i+3}]" if i<256 else f"v[{224+i-256}:{224+i-256+3}]"
    kernel_begin(a, name)
    a("s_cmp_ge_u32 s2, 256")
    a(f"s_cbranch_scc1 {name}_end")
    a(f"s_load_dwordx4 s[4:7], s[0:1], {KA['wg']}")
    a(f"s_load_dwordx2 s[10:11], s[0:1], {KA['ws']}")
    a("v_lshrrev_b32 v1, 6, v0")
    a("s_and_b32 s3, s2, 7")
    a("s_lshr_b32 s8, s2, 3")
    a("v_readfirstlane_b32 s30, v1")
    a("s_lshr_b32 s9, s3, 2")
    a("s_lshl_b32 s9, s9, 2")
    a("s_lshr_b32 s28, s8, 3")
    a("s_add_u32 s9, s9, s28")
    a("s_and_b32 s3, s3, 3")
    a("s_and_b32 s8, s8, 7")
    a("s_and_b32 s31, s8, 1")
    a("s_lshr_b32 s8, s8, 1")
    a("s_mul_i32 s3, s3, 36")
    a("s_mul_i32 s8, s8, 9")
    a("s_add_u32 s3, s3, s8")
    a("s_add_u32 s32, s3, 4")
    a("s_mul_i32 s8, s31, 5")
    a("s_add_u32 s33, s3, s8")
    a("s_lshl_b32 s9, s9, 4")
    a("s_lshl_b32 s8, s30, 2")
    a("s_add_u32 s9, s9, s8")
    a("s_lshl_b32 s8, s31, 1")
    for sl in range(4):
        a(f"s_xor_b32 s28, s8, {sl}")
        a(f"s_add_u32 s28, s28, s9")
        a(f"s_mul_i32 s{50+sl}, s28, 18432")
        a(f"s_mul_i32 s{54+sl}, s28, 147456")
    for i in range(9): a(f"s_mov_b32 s{40+i}, {i*16*9216-(i%4)*1024}")
    a("s_mul_i32 s34, s30, 9216")
    a("v_and_b32 v15, 63, v0")
    a(f"v_lshlrev_b32 v{VL}, 4, v15")
    a("v_lshrrev_b32 v16, 2, v15")
    a("s_mul_i32 s8, s30, 144")
    a("v_add_u32 v16, s8, v16")
    a("v_mul_u32_u24 v16, 9216, v16")
    a("v_lshrrev_b32 v17, 4, v15")
    a("v_and_b32 v17, 2, v17")
    a("v_and_b32 v18, 3, v15")
    a("v_xor_b32 v17, v17, v18")
    a(f"v_lshl_add_u32 v{VD0}, v17, 4, v16")
    a("s_lshl_b32 s8, s32, 6")
    a(f"v_add_u32 v{VD}, s8, v{VD0}")
    a("v_lshrrev_b32 v16, 4, v15")
    a("v_bfe_u32 v17, v15, 2, 2")
    a("v_lshl_add_u32 v17, v16, 3, v17")
    a("v_lshlrev_b32 v17, 6, v17")
    a("v_and_b32 v18, 3, v15")
    a("v_lshl_add_u32 v17, v18, 3, v17")
    a("v_and_b32 v16, 1, v16")
    a(f"v_lshl_add_u32 v{VA}, v16, 5, v17")
    a(f"v_xor_b32 v{VA+1}, 32, v{VA}")
    for st in range(2):
        for sb in range(2):
            if st==0 and sb==0: continue
            for t in range(2): a(f"v_add_u32 v{VA+st*4+sb*2+t}, {(st*2+sb)*SLAB}, v{VA+t}")
    a(f"v_mov_b32 v{VC1}, {fbits(C1)}")
    a(f"s_mov_b32 s35, {fbits(C0)}")
    for j in range(1,5): a(f"v_add_u32 v{23+j}, {4096*j}, v{VL}")
    a("s_waitcnt lgkmcnt(0)")
    a.srd(12, 4, SZ['wg']); a.srd(16, 6, SZ['wu'])
    srd_ws(a, 20, 10, H2, TSZ); srd_ws(a, 24, 10, HH, HHSZ)
    def dma(stage_sgpr_or_const):
        L=[]
        for sb in range(2):
            for i in range(9):
                srd=12+4*sb
                t=""
                if i%4==0: t=f"s_add_u32 m0, {stage_sgpr_or_const}, {sb*SLAB+i*1024}\ns_nop 0\n"
                L.append((t+f"buffer_load_dwordx4 v{VD}, s[{srd}:{srd+3}], s{40+i} offen offset:{(i%4)*1024} lds", 3 if t else 1))
        return L
    def bload(sl,ks):
        v = VL if ks<4 else 23+ks//4
        return f"buffer_load_dwordx4 {breg(sl,ks)}, v{v}, s[20:23], s{50+sl} offen offset:{(ks%4)*1024}"
    def areads(stage,t,n,buf):
        L=[]
        for sb in range(2):
            for j in range(2):
                d=AF+buf*16+(sb*2+j)*4
                for hf in range(2):
                    L.append(f"ds_read_b64_tr_b16 v[{d+2*hf}:{d+2*hf+1}], v{VA+stage*4+sb*2+t} offset:{(2*n+j)*2048+hf*256}")
        return L
    def mfmas(t,n,buf,slots):
        L=[]
        for sb in range(2):
            for sl in slots:
                acc=ACC+t*32+sb*16+sl*4
                for j in range(2):
                    d=AF+buf*16+(sb*2+j)*4
                    c="0" if (n==0 and j==0) else f"v[{acc}:{acc+3}]"
                    L.append(f"v_mfma_f32_16x16x32_bf16 v[{acc}:{acc+3}], v[{d}:{d+3}], {breg(sl,2*n+j)}, {c}")
        return L
    def gelu(t,slots,store):
        L=[]
        for bi,sl in enumerate(slots):
            G=ACC+t*32+sl*4; U=G+16; T=TMP+(bi&1)*4
            for r in range(4): L.append((f"v_mul_f32 v{T+r}, v{G+r}, v{G+r}",1))
            for r in range(4): L.append((f"v_fma_f32 v{T+r}, v{T+r}, v{VC1}, s35",1))
            for r in range(4): L.append((f"v_mul_f32 v{T+r}, v{T+r}, v{G+r}",1))
            for r in range(4): L.append((f"v_exp_f32 v{T+r}, v{T+r}",2))
            for r in range(4): L.append((f"v_mul_f32 v{U+r}, v{U+r}, v{G+r}",1))
            for r in range(4): L.append((f"v_add_f32 v{T+r}, 1.0, v{T+r}",1))
            for r in range(4): L.append((f"v_rcp_f32 v{T+r}, v{T+r}",2))
            L.append((f"v_mul_f32 v{U}, v{U}, v{T}",1)); L.append((f"v_mul_f32 v{U+1}, v{U+1}, v{T+1}",1))
            L.append((f"v_mul_f32 v{U+2}, v{U+2}, v{T+2}",1)); L.append((f"v_mul_f32 v{U+3}, v{U+3}, v{T+3}",1))
            for q in range(2): L.append((f"v_cvt_pk_bf16_f32 v{HP+sl*4+2*t+q}, v{U+2*q}, v{U+2*q+1}",1))
            if store: L.append((f"buffer_store_dwordx4 v[{HP+sl*4}:{HP+sl*4+3}], v{VH}, s[24:27], s{58+sl} offen",1))
        return L
    def split(L,n):
        tot=sum(c for _,c in L); out=[[] for _ in range(n)]; acc=0
        for x in L:
            i=min(n-1,int((acc+x[1]*0.5)*n/max(tot,1))); out[i].append(x); acc+=x[1]
        return out
    a("s_mov_b32 s36, s34")
    a(f"s_add_u32 s37, s34, {2*SLAB}")
    for x,_ in dma("s36"): a(x)
    for ks in range(18):
        for sl in range(2): a(bload(sl,ks))
    a("s_lshl_b32 s8, s33, 6")
    a(f"v_add_u32 v{VD}, s8, v{VD0}")
    a("s_lshl_b32 s8, s32, 10")
    a(f"v_add_u32 v{VH}, s8, v{VL}")
    a("s_mov_b32 s58, s54"); a("s_mov_b32 s59, s55"); a("s_mov_b32 s60, 0x7ff00000"); a("s_mov_b32 s61, 0x7ff00000")
    a("s_waitcnt vmcnt(36)")
    a("s_barrier")
    for x in areads(0,0,0,0): a(x)
    later=dma("s37")+[(bload(sl,ks),1) for ks in range(18) for sl in (2,3)]
    lsp=[later[3*i:3*i+3] for i in range(18)]
    issued=0
    for t in range(2):
        gl=split(gelu(0,(0,1),False),9) if t==1 else [[] for _ in range(9)]
        for n in range(9):
            gi=t*9+n; buf=gi&1
            if t==0: a(f"s_waitcnt vmcnt({36-4*(n+1)+issued}) lgkmcnt(0)")
            elif n==8:
                a(f"s_waitcnt vmcnt({issued-18}) lgkmcnt(0)")
                a("s_barrier")
            else: a("s_waitcnt lgkmcnt(0)")
            if gi<17: nx=areads(0,(gi+1)//9,(gi+1)%9,buf^1)
            else: nx=areads(1,0,0,buf^1)
            interleave(a, mfmas(t,n,buf,(0,1)), nx, gl[n]+lsp[gi])
            issued+=3
    a("s_waitcnt vmcnt(0)")
    a("s_mov_b32 s38, 0")
    a.label(f"{name}_loop")
    for half in range(2):
        stage=1-half
        a("s_add_u32 s8, s33, s38")
        a("s_add_u32 s28, s8, 1")
        a("s_lshl_b32 s28, s28, 6")
        a("s_cmp_eq_u32 s38, 3")
        a("s_cselect_b32 s28, 0x7ff00000, s28")
        a(f"v_add_u32 v{VD}, s28, v{VD0}")
        for t in range(2):
            gl=split(gelu(t^1,(0,1,2,3),t==0),9)
            dl=split(dma("s36" if stage==1 else "s37"),9) if t==0 else [[] for _ in range(9)]
            for n in range(9):
                gi=t*9+n; buf=gi&1
                if gi==17:
                    cnt=0
                    for ln in reversed(a.l):
                        if "buffer_" in ln:
                            if ln.rstrip().endswith(" lds"): break
                            cnt+=1
                    a(f"s_waitcnt vmcnt({cnt}) lgkmcnt(0)")
                    a("s_barrier")
                else: a("s_waitcnt lgkmcnt(0)")
                if gi<17: nx=areads(stage,(gi+1)//9,(gi+1)%9,buf^1)
                else: nx=areads(stage^1,0,0,buf^1)
                extra=[]
                if gi==9:
                    extra=[("s_lshl_b32 s8, s8, 10",1),(f"v_add_u32 v{VH}, s8, v{VL}",1),("s_mov_b32 s60, s56",1),("s_mov_b32 s61, s57",1),("s_add_u32 s38, s38, 1",1)]
                bulk=[]
                g=list(gl[n]); d=list(dl[n])
                while g or d:
                    for _ in range(8):
                        if g: bulk.append(g.pop(0))
                    if d: bulk.append(d.pop(0))
                interleave(a, mfmas(t,n,buf,(0,1,2,3)), nx, extra+bulk)
    a("s_cmp_lt_u32 s38, 4")
    a(f"s_cbranch_scc1 {name}_loop")
    a("s_nop 7")
    for x,_ in gelu(1,(0,1,2,3),True): a(x)
    a("s_waitcnt lgkmcnt(0)")
    a.label(f"{name}_end")
    a("s_endpgm")
    return kernel_desc(name, 512, 256, 70)

K4_LDS=4*SLAB
def k4(a, name):
    VA=2; VDM=6; VL=15; AF=16; ACC=64
    def breg(sl,kp):
        i=(kp*4+sl)*4
        return f"a[{i}:{i+3}]" if i<256 else f"v[{224+i-256}:{224+i-256+3}]"
    kernel_begin(a, name)
    a("s_cmp_ge_u32 s2, 256")
    a(f"s_cbranch_scc1 {name}_end")
    a(f"s_load_dwordx2 s[4:5], s[0:1], {KA['wd']}")
    a(f"s_load_dwordx2 s[10:11], s[0:1], {KA['ws']}")
    a("v_lshrrev_b32 v1, 6, v0")
    a("s_and_b32 s3, s2, 7")
    a("s_lshr_b32 s8, s2, 3")
    a("v_readfirstlane_b32 s30, v1")
    a("s_lshr_b32 s9, s3, 2")
    a("s_lshl_b32 s9, s9, 3")
    a("s_lshr_b32 s28, s8, 2")
    a("s_add_u32 s9, s9, s28")
    a("s_and_b32 s3, s3, 3")
    a("s_and_b32 s31, s8, 3")
    a("s_and_b32 s32, s30, 1")
    a("s_lshr_b32 s33, s30, 1")
    a("s_lshl_b32 s9, s9, 3")
    a("s_lshl_b32 s8, s33, 2")
    a("s_add_u32 s9, s9, s8")
    a("s_mul_i32 s8, s3, 36")
    a("s_mul_i32 s28, s32, 18")
    a("s_add_u32 s8, s8, s28")
    a("s_lshl_b32 s8, s8, 10")
    for sl in range(4):
        a(f"s_add_u32 s28, s9, {sl}")
        a(f"s_mul_i32 s28, s28, 147456")
        a(f"s_add_u32 s{50+sl}, s28, s8")
    a(f"s_mul_i32 s36, s3, {1152*1152}")
    a("s_mul_i32 s34, s30, 9216")
    a("v_and_b32 v32, 63, v0")
    a(f"v_lshlrev_b32 v{VL}, 4, v32")
    a("s_mul_i32 s8, s30, 576")
    a("s_mov_b32 s28, 238609295")
    a("s_mul_i32 s29, s31, 288")
    for i in range(9):
        a(f"v_add_u32 v33, {64*i}, v32")
        a("v_add_u32 v33, s8, v33")
        a("v_mul_hi_u32 v34, v33, s28")
        a("v_mul_u32_u24 v35, 18, v34")
        a("v_sub_u32 v33, v33, v35")
        a("v_lshrrev_b32 v35, 6, v34")
        a("v_mul_u32_u24 v35, 512, v35")
        a("v_add_u32 v34, v34, v35")
        a("v_mul_u32_u24 v34, 1152, v34")
        a("v_lshl_add_u32 v34, v33, 4, v34")
        a(f"v_add_u32 v{VDM+i}, s29, v34")
    a("v_lshrrev_b32 v33, 2, v32")
    a("v_mul_u32_u24 v33, 288, v33")
    a("v_and_b32 v34, 3, v32")
    a("v_lshl_add_u32 v33, v34, 3, v33")
    a("s_mul_i32 s8, s32, 18432")
    a(f"v_add_u32 v{VA}, s8, v33")
    for st in range(1,4): a(f"v_add_u32 v{VA+st}, {st*SLAB}, v{VA}")
    for j in range(1,5): a(f"v_add_u32 v{39+j}, {4096*j}, v{VL}")
    a("s_waitcnt lgkmcnt(0)")
    a.srd(12, 4, SZ['wd'])
    srd_ws(a, 20, 10, HH, HHSZ); srd_ws(a, 24, 10, PART, 4*TSZ)
    def dma(stage):
        L=[]
        for i in range(9):
            L.append((f"s_add_u32 m0, s34, {(stage%4)*SLAB+i*1024}\ns_nop 0\nbuffer_load_dwordx4 v{VDM+i}, s[12:15], s36 offen lds",3))
        L.append((f"s_add_u32 s36, s36, {64*1152}",1))
        return L
    def bload(sl,kp):
        v = VL if kp<4 else 39+kp//4
        return (f"buffer_load_dwordx4 {breg(sl,kp)}, v{v}, s[20:23], s{50+sl} offen offset:{(kp%4)*1024}",1)
    def areads(stage,dt,buf):
        L=[]
        for j in range(2):
            d=AF+buf*8+j*4
            for hf in range(2):
                L.append(f"ds_read_b64_tr_b16 v[{d+2*hf}:{d+2*hf+1}], v{VA+stage%4} offset:{(32*j+16*hf)*288+32*dt}")
        return L
    def mfmas(stage,dt,buf):
        L=[]
        for sl in range(4):
            acc=ACC+(sl*9+dt)*4
            for j in range(2):
                d=AF+buf*8+j*4
                c="0" if (stage==0 and j==0) else f"v[{acc}:{acc+3}]"
                L.append(f"v_mfma_f32_16x16x32_bf16 v[{acc}:{acc+3}], v[{d}:{d+3}], {breg(sl,2*stage+j)}, {c}")
        return L
    seq=[]
    def emit(x,tag):
        a(x[0])
        if "buffer_" in x[0]: seq.append(tag)
    def waitfor(tags):
        last=max(i for i,t in enumerate(seq) if t in tags)
        return min(63,len(seq)-1-last)
    for x in dma(0): emit(x,("d",0))
    for kp in range(2):
        for sl in range(4): emit(bload(sl,kp),("b",0))
    for st in (1,2):
        for x in dma(st): emit(x,("d",st))
        for kp in (2*st,2*st+1):
            for sl in range(4): emit(bload(sl,kp),("b",st))
    a(f"s_waitcnt vmcnt({waitfor([('d',0)])})")
    a("s_barrier")
    for x in areads(0,0,0): a(x)
    for st in range(9):
        pend=[]
        if st+3<9:
            pend=[(x,("b",st+3)) for kp in (2*st+6,2*st+7) for x in [bload(sl,kp) for sl in range(4)]]
        for dt in range(9):
            gi=st*9+dt; buf=gi&1
            w="s_waitcnt lgkmcnt(0)"
            if dt==0: w=f"s_waitcnt vmcnt({waitfor([('b',st)])}) lgkmcnt(0)"
            if dt==8 and st<8: w=f"s_waitcnt vmcnt({waitfor([('d',st+1)])}) lgkmcnt(0)"
            a(w)
            if dt==8 and st<8: a("s_barrier")
            nx=[]
            if gi<80: nx=areads((gi+1)//9,(gi+1)%9,buf^1)
            bulk=[]
            if dt==0 and st+3<9: pend=[(x,("d",st+3)) for x in dma(st+3)]+pend
            take=pend[:3] if dt<8 else []
            pend=pend[3:] if dt<8 else pend
            for x,tag in take:
                bulk.append(x)
                if "buffer_" in x[0]: seq.append(tag)
            interleave(a, mfmas(st,dt,buf), nx, bulk)
        assert not pend
    a(f"s_mul_i32 s8, s30, 18432")
    a(f"s_add_u32 s8, s8, {SLAB}")
    a(f"v_add_u32 v33, s8, v{VL}")
    a(f"s_xor_b32 s28, s30, 1")
    a(f"s_mul_i32 s28, s28, 18432")
    a(f"s_add_u32 s28, s28, {SLAB}")
    a(f"v_add_u32 v34, s28, v{VL}")
    a("s_cmp_eq_u32 s32, 0")
    a(f"s_cbranch_scc1 {name}_kh0")
    def tail(send,keep,lbl):
        for i in range(18):
            r=ACC+(send*9+i)*4
            a(f"ds_write_b128 v33, v[{r}:{r+3}] offset:{1024*i}")
        a("s_waitcnt lgkmcnt(0)")
        a("s_barrier")
        for i in range(18):
            r=ACC+(send*9+i)*4
            a(f"ds_read_b128 v[{r}:{r+3}], v34 offset:{1024*i}")
        a("v_and_b32 v35, 15, v32")
        a("v_lshrrev_b32 v36, 4, v32")
        a("v_lshlrev_b32 v36, 7, v36")
        a("v_lshl_add_u32 v35, v35, 3, v36")
        a(f"s_mul_i32 s8, s3, {TSZ}")
        a(f"s_add_u32 s28, s9, {keep}")
        a("s_mul_i32 s28, s28, 18432")
        a("s_add_u32 s8, s8, s28")
        a("s_mul_i32 s28, s31, 4608")
        a("s_add_u32 s8, s8, s28")
        a("s_add_u32 s28, s8, 18432")
        a("v_add_u32 v36, 4096, v35")
        for i in range(18):
            r=ACC+(send*9+i)*4; k=ACC+(keep*9+i)*4
            a(f"s_waitcnt lgkmcnt({min(15,17-i)})")
            for q in range(4): a(f"v_add_f32 v{k+q}, v{k+q}, v{r+q}")
            a(f"v_cvt_pk_bf16_f32 v{k}, v{k}, v{k+1}")
            a(f"v_cvt_pk_bf16_f32 v{k+1}, v{k+2}, v{k+3}")
            dt=i%9
            so="s8" if i<9 else "s28"
            if dt<8: a(f"buffer_store_dwordx2 v[{k}:{k+1}], v35, s[24:27], {so} offen offset:{512*dt}")
            else: a(f"buffer_store_dwordx2 v[{k}:{k+1}], v36, s[24:27], {so} offen")
        a("s_endpgm")
    a("s_nop 7")
    tail(0,2,"a")
    a.label(f"{name}_kh0")
    a("s_nop 7")
    tail(2,0,"b")
    a.label(f"{name}_end")
    a("s_endpgm")
    return kernel_desc(name, 512, 256, 70)

def k5(a, name):
    kernel_begin(a, name)
    a("s_cmp_ge_u32 s2, 256")
    a(f"s_cbranch_scc1 {name}_end")
    a(f"s_load_dwordx2 s[4:5], s[0:1], {KA['out']}")
    a(f"s_load_dwordx2 s[10:11], s[0:1], {KA['ws']}")
    a("v_and_b32 v1, 7, v0")
    a("v_lshrrev_b32 v2, 3, v0")
    a("s_lshl_b32 s3, s2, 3")
    a("v_add_u32 v3, s3, v1")
    a("v_mul_u32_u24 v4, 1152, v3")
    a("v_lshl_add_u32 v4, v2, 4, v4")
    a("s_lshr_b32 s6, s2, 1")
    a("s_mul_i32 s6, s6, 18432")
    a("v_and_b32 v3, 15, v3")
    a("v_lshlrev_b32 v5, 8, v2")
    a("v_lshl_add_u32 v5, v3, 3, v5")
    a("v_lshlrev_b32 v7, 5, v2")
    a("s_waitcnt lgkmcnt(0)")
    a.srd(12, 4, SZ['out'])
    srd_ws(a, 16, 10, PART, 4*TSZ); srd_ws(a, 20, 10, MODP, 27648); srd_ws(a, 28, 10, X1, TSZ)
    for p in range(4):
        a(f"s_add_u32 s8, s6, {p*TSZ}")
        a(f"buffer_load_dwordx2 v[{8+4*p}:{9+4*p}], v5, s[16:19], s8 offen")
        a(f"buffer_load_dwordx2 v[{10+4*p}:{11+4*p}], v5, s[16:19], s8 offen offset:128")
    a("buffer_load_dwordx2 v[24:25], v5, s[28:31], s6 offen")
    a("buffer_load_dwordx2 v[26:27], v5, s[28:31], s6 offen offset:128")
    for p in range(2):
        a(f"s_mov_b32 s8, {5*2304+p*13824}")
        a(f"buffer_load_dwordx4 v[{28+8*p}:{31+8*p}], v7, s[20:23], s8 offen")
        a(f"buffer_load_dwordx4 v[{32+8*p}:{35+8*p}], v7, s[20:23], s8 offen offset:16")
    a("s_mov_b32 s34, 0xffff0000")
    S=48; T=56
    for p in range(4):
        a(f"s_waitcnt vmcnt({12-2*p})")
        d = S if p==0 else T
        for q in range(4):
            a(f"v_lshlrev_b32 v{d+2*q}, 16, v{8+4*p+q}")
            a(f"v_and_b32 v{d+2*q+1}, s34, v{8+4*p+q}")
        if p:
            for j in range(8): a(f"v_add_f32 v{S+j}, v{S+j}, v{T+j}")
    a("s_waitcnt vmcnt(0)")
    for q in range(4):
        a(f"v_lshlrev_b32 v{T+2*q}, 16, v{24+q}")
        a(f"v_and_b32 v{T+2*q+1}, s34, v{24+q}")
    for j in range(8): a(f"v_add_f32 v{28+j}, v{28+j}, v{36+j}")
    for q in range(4): a(f"v_cvt_pk_bf16_f32 v{36+q}, v{28+2*q}, v{29+2*q}")
    for q in range(4):
        a(f"v_lshlrev_b32 v{28+2*q}, 16, v{36+q}")
        a(f"v_and_b32 v{29+2*q}, s34, v{36+q}")
    for j in range(8): a(f"v_fmac_f32 v{T+j}, v{S+j}, v{28+j}")
    for q in range(4): a(f"v_cvt_pk_bf16_f32 v{8+q}, v{T+2*q}, v{T+2*q+1}")
    a("buffer_store_dwordx4 v[8:11], v4, s[12:15], 0 offen")
    a.label(f"{name}_end")
    a("s_endpgm")
    return kernel_desc(name, 64, 64, 40)
```

```python
from asmlib import *
XT=0x000000; YO=0x240000; MODP=0x480000; H2=0x4C0000; X1=0x700000; HH=0x940000; PART=0x1B40000
TSZ=2359296

def srd_ws(a, s, wsreg, off, size):
    a(f"s_add_u32 s{s}, s{wsreg}, {off}")
    a(f"s_addc_u32 s{s+1}, s{wsreg+1}, 0")
    a(f"s_and_b32 s{s+1}, s{s+1}, 0xffff")
    a(f"s_mov_b32 s{s+2}, {size}")
    a(f"s_mov_b32 s{s+3}, 0x00020000")

def k0(a, name):
    kernel_begin(a, name)
    a("s_cmp_ge_u32 s2, 288")
    a(f"s_cbranch_scc1 {name}_end")
    a(f"s_load_dwordx4 s[4:7], s[0:1], {KA['k']}")
    a(f"s_load_dwordx2 s[8:9], s[0:1], {KA['shift']}")
    a(f"s_load_dwordx2 s[10:11], s[0:1], {KA['ws']}")
    a("v_lshl_add_u32 v1, s2, 8, v0")
    a("s_mov_b32 s3, 14913081")
    a("v_mul_hi_u32 v2, v1, s3")
    a("v_mul_u32_u24 v3, 288, v2")
    a("v_sub_u32 v3, v1, v3")
    a("v_mul_u32_u24 v4, 9216, v2")
    a("v_lshl_add_u32 v5, v3, 2, v4")
    a("v_subrev_u32 v6, 3456, v5")
    a("v_lshlrev_b32 v7, 4, v3")
    a("v_lshl_add_u32 v8, v3, 5, v4")
    a("s_mov_b32 s28, 4608")
    a("s_waitcnt lgkmcnt(0)")
    a.srd(12, 4, SZ['k']); a.srd(16, 6, SZ['v']); a.srd(20, 8, SZ['shift'])
    srd_ws(a, 24, 10, XT, TSZ)
    K=10; V=22; W=32
    a(f"buffer_load_dwordx4 v[{W}:{W+3}], v7, s[20:23], 0 offen")
    for i in range(3): a(f"buffer_load_dword v{K+i}, v6, s[12:15], 0 offen offset:{i*1152}")
    for r in range(8):
        so = "0" if r<4 else "s28"
        a(f"buffer_load_dword v{K+3+r}, v5, s[12:15], {so} offen offset:{(r%4)*1152}")
    for r in range(8):
        so = "0" if r<4 else "s28"
        a(f"buffer_load_dword v{V+r}, v5, s[16:19], {so} offen offset:{(r%4)*1152}")
    KF=36; WF=48; O=52; P=60; T=68
    a("s_mov_b32 s29, 0xffff0000")
    a("s_waitcnt vmcnt(8)")
    for ch in range(2):
        for j in range(4):
            src=W+2*ch+(j>>1)
            a(f"v_and_b32 v{WF+j}, s29, v{src}" if j&1 else f"v_lshlrev_b32 v{WF+j}, 16, v{src}")
        for i in range(11):
            a(f"v_and_b32 v{KF+i}, s29, v{K+i}" if ch else f"v_lshlrev_b32 v{KF+i}, 16, v{K+i}")
        for r in range(8): a(f"v_mul_f32 v{O+r}, v{KF+r}, v{WF+3}")
        for j in (2,1,0):
            for r in range(8): a(f"v_fmac_f32 v{O+r}, v{KF+r+3-j}, v{WF+j}")
        if ch==0: a("s_waitcnt vmcnt(0)")
        for r in range(8):
            a(f"v_and_b32 v{T+r}, s29, v{V+r}" if ch else f"v_lshlrev_b32 v{T+r}, 16, v{V+r}")
        for r in range(8): a(f"v_mul_f32 v{O+r}, v{O+r}, v{T+r}")
        for q in range(4): a(f"v_cvt_pk_bf16_f32 v{P+4*ch+q}, v{O+7-2*q}, v{O+6-2*q}")
        a(f"buffer_store_dwordx4 v[{P+4*ch}:{P+4*ch+3}], v8, s[24:27], 0 offen offset:{16*ch}")
    a.label(f"{name}_end")
    a("s_endpgm")
    return kernel_desc(name, 80, 80, 40)

CS=4160; HB=0; XS=4640; XB=16*CS; K1_LDS=XB+4*XS
def k1(a, name):
    kernel_begin(a, name)
    a("s_cmp_ge_u32 s2, 252")
    a(f"s_cbranch_scc1 {name}_end")
    a(f"s_load_dwordx2 s[10:11], s[0:1], {KA['ws']}")
    a("s_cmp_ge_u32 s2, 144")
    a(f"s_cbranch_scc1 {name}_mod")
    a(f"s_load_dwordx4 s[4:7], s[0:1], {KA['ssmk']}")
    a("v_lshrrev_b32 v1, 6, v0")
    a("s_and_b32 s3, s2, 7")
    a("s_mul_i32 s3, s3, 18")
    a("s_lshr_b32 s8, s2, 3")
    a("v_readfirstlane_b32 s30, v1")
    a("s_add_u32 s3, s3, s8")
    a("v_and_b32 v2, 63, v0")
    a("s_lshl_b32 s8, s3, 2")
    a("s_add_u32 s31, s8, s30")
    a("v_lshrrev_b32 v3, 2, v0")
    a("v_and_b32 v4, 3, v0")
    a("v_mul_u32_u24 v5, 9216, v3")
    a("v_add_u32 v6, s8, v4")
    a("v_lshl_add_u32 v5, v6, 4, v5")
    a(f"v_mul_u32_u24 v6, {XS}, v4")
    a("v_lshl_add_u32 v6, v3, 4, v6")
    a(f"v_add_u32 v6, {XB+512}, v6")
    a("v_lshlrev_b32 v7, 4, v2")
    a("v_subrev_u32 v8, 32, v7")
    a("v_subrev_u32 v9, 16, v7")
    a("s_waitcnt lgkmcnt(0)")
    srd_ws(a, 12, 10, XT, TSZ)
    a("s_lshl_b32 s9, s31, 12")
    a("s_add_u32 s16, s4, s9")
    a("s_addc_u32 s17, s5, 0")
    a("s_and_b32 s17, s17, 0xffff")
    a("s_mov_b32 s18, 4096")
    a("s_mov_b32 s19, 0x00020000")
    a.srd(20, 6, SZ['ssmD'])
    srd_ws(a, 24, 10, YO, TSZ)
    XL=16; HL=32
    for i in range(4):
        a(f"s_mov_b32 s9, {i*64*9216}")
        a(f"buffer_load_dwordx4 v[{XL+4*i}:{XL+4*i+3}], v5, s[12:15], s9 offen")
    for i in range(4):
        a(f"buffer_load_dwordx4 v[{HL+8*i}:{HL+8*i+3}], v7, s[16:19], 0 offen offset:{1024*i}")
        a(f"buffer_load_dwordx2 v[{HL+8*i+4}:{HL+8*i+5}], v7, s[16:19], 0 offen offset:{1024*i+16}")
    a(f"buffer_load_dwordx2 v[{HL+36}:{HL+37}], v9, s[16:19], 0 offen")
    a("s_lshl_b32 s9, s31, 1")
    a("v_mov_b32 v10, s9")
    a("buffer_load_ushort v11, v10, s[20:23], 0 offen")
    for i in range(4): a(f"v_mov_b32 v{HL+32+i}, 0")
    a(f"s_mul_i32 s9, s30, {XS}")
    a(f"s_add_u32 s9, s9, {XB}")
    a("v_add_u32 v12, s9, v7")
    a("s_mov_b64 s[34:35], exec")
    a("s_mov_b32 exec_hi, 0")
    a(f"ds_write_b128 v12, v[{HL+32}:{HL+35}]")
    a("s_mov_b64 exec, s[34:35]")
    a(f"s_mul_i32 s9, s30, {4*CS}")
    a("v_add_u32 v13, s9, v7")
    a("v_and_b32 v14, 15, v2")
    a("v_lshrrev_b32 v15, 4, v2")
    a("s_waitcnt vmcnt(10)")
    for i in range(4):
        a(f"ds_write_b128 v6, v[{XL+4*i}:{XL+4*i+3}] offset:{1024*i}")
    T=72
    def copies(base, off, tset):
        t=T+tset*12
        a(f"ds_write_b128 v13, v[{base}:{base+3}] offset:{off}")
        for q in range(4): a(f"v_alignbit_b32 v{t+q}, v{base+q+1}, v{base+q}, 16")
        a(f"ds_write_b128 v13, v[{t}:{t+3}] offset:{off+CS}")
        for q in range(4): a(f"v_mov_b32 v{t+4+q}, v{base+q+1}")
        a(f"ds_write_b128 v13, v[{t+4}:{t+7}] offset:{off+2*CS}")
        for q in range(4): a(f"v_alignbit_b32 v{t+8+q}, v{base+q+2}, v{base+q+1}, 16")
        a(f"ds_write_b128 v13, v[{t+8}:{t+11}] offset:{off+3*CS}")
    for i in range(4):
        a(f"s_waitcnt vmcnt({8-2*i})")
        copies(HL+8*i, 32+1024*i, i&1)
    a("s_waitcnt vmcnt(0)")
    a("s_mov_b64 exec, 3")
    copies(HL+32, 0, 0)
    a("s_mov_b64 exec, s[34:35]")
    a("v_lshlrev_b32 v3, 1, v14")
    a("v_sub_u32 v3, v3, v15")
    a("v_add_u32 v3, 5, v3")
    a(f"s_mul_i32 s9, s30, {XS}")
    a(f"s_add_u32 s9, s9, {XB}")
    a("v_lshl_add_u32 v3, v3, 4, s9")
    a("v_add_u32 v4, 1, v14")
    a("v_and_b32 v5, 3, v4")
    a("v_sub_u32 v4, v4, v5")
    a("v_lshl_add_u32 v4, v15, 3, v4")
    a("v_lshlrev_b32 v4, 1, v4")
    a(f"v_mul_u32_u24 v5, {CS}, v5")
    a(f"s_mul_i32 s9, s30, {4*CS}")
    a("v_add3_u32 v4, v4, v5, s9")
    DF=96
    a("v_lshl_add_u32 v5, v15, 3, v14")
    a("v_sub_u32 v5, 15, v5")
    a("v_and_b32 v7, 1, v5")
    a("v_lshlrev_b32 v7, 4, v7")
    a("v_lshlrev_b32 v7, v7, v11")
    a("v_ashrrev_i32 v5, 1, v5")
    for q in range(4):
        a(f"v_cmp_eq_u32 vcc, {q}, v5")
        a(f"v_cndmask_b32 v{DF+q}, 0, v7, vcc")
    a("v_lshlrev_b32 v12, 9, v15")
    a("v_lshl_add_u32 v12, v14, 3, v12")
    a("s_lshl_b32 s9, s30, 1")
    a("v_add_u32 v12, s9, v12")
    a("s_waitcnt lgkmcnt(0)")
    a("s_barrier")
    ACC=100; FB=[132, 196-0]
    def xreg(buf,w):
        return f"v[{132+4*w}:{132+4*w+3}]" if buf==0 else f"a[{4*w}:{4*w+3}]"
    def hreg(buf,u,half=None):
        b = 164+4*u if buf==0 else 32+4*u
        p = "v" if buf==0 else "a"
        if half is None: return f"{p}[{b}:{b+3}]"
        return f"{p}[{b+2*half}:{b+2*half+1}]"
    def reads(p):
        buf=p&1; L=[]
        for z in range(8):
            L.append(f"ds_read_b128 {xreg(buf,z)}, v3 offset:{512*z+64*(7-p)}")
            L.append(f"ds_read_b64 {hreg(buf,z,0)}, v4 offset:{512*z+64*p}")
            L.append(f"ds_read_b64 {hreg(buf,z,1)}, v4 offset:{512*z+64*p+8}")
        return L
    for x in reads(0): a(x)
    for p in range(8):
        buf=p&1
        nxt = reads(p+1) if p<7 else []
        a("s_waitcnt lgkmcnt(0)")
        seq=[]
        if p==0:
            for c in range(8): seq.append((c, xreg(0,c), f"v[{DF}:{DF+3}]", True))
        for c in range(7,-1,-1):
            for u in range(c+1): seq.append((c, xreg(buf,c-u), hreg(buf,u), False))
        for n,(c,A_,B_,first) in enumerate(seq):
            acc=f"v[{ACC+4*c}:{ACC+4*c+3}]"
            a(f"v_mfma_f32_16x16x32_bf16 {acc}, {A_}, {B_}, {'0' if first else acc}")
            if nxt: a(nxt.pop(0))
        assert not nxt
    a("s_barrier")
    for c in range(7,-1,-1):
        a(f"v_cvt_pk_bf16_f32 v{16+2*c}, v{ACC+4*c}, v{ACC+4*c+1}")
        a(f"v_cvt_pk_bf16_f32 v{17+2*c}, v{ACC+4*c+2}, v{ACC+4*c+3}")
        a(f"ds_write_b16 v12, v{16+2*c} offset:{2048*c}")
        a(f"ds_write_b16_d16_hi v12, v{16+2*c} offset:{2048*c+128}")
        a(f"ds_write_b16 v12, v{17+2*c} offset:{2048*c+256}")
        a(f"ds_write_b16_d16_hi v12, v{17+2*c} offset:{2048*c+384}")
    a("v_lshlrev_b32 v5, 4, v0")
    a("v_lshrrev_b32 v6, 3, v0")
    a("v_mul_u32_u24 v6, 18432, v6")
    a("v_and_b32 v7, 7, v0")
    a("v_lshl_add_u32 v6, v7, 4, v6")
    a("s_lshl_b32 s9, s3, 7")
    a("v_add_u32 v6, s9, v6")
    a("s_waitcnt lgkmcnt(0)")
    a("s_barrier")
    for i in range(4): a(f"ds_read_b128 v[{32+4*i}:{35+4*i}], v5 offset:{4096*i}")
    for i in range(4):
        a(f"s_mov_b32 s9, {i*32*18432}")
        a(f"s_waitcnt lgkmcnt({3-i})")
        a(f"buffer_store_dwordx4 v[{32+4*i}:{35+4*i}], v6, s[24:27], s9 offen")
    a("s_endpgm")
    a.label(f"{name}_mod")
    a(f"s_load_dwordx4 s[4:7], s[0:1], {KA['c']}")
    a("s_sub_u32 s3, s2, 144")
    a("s_cmp_ge_u32 s3, 54")
    a("s_cselect_b32 s8, 1, 0")
    a("s_mul_i32 s9, s8, 54")
    a("s_sub_u32 s3, s3, s9")
    a("v_lshrrev_b32 v1, 3, v0")
    a("v_and_b32 v2, 7, v0")
    a("s_mul_i32 s9, s8, 288")
    a("v_add_u32 v3, s9, v1")
    a("v_lshlrev_b32 v4, 1, v3")
    a("v_mul_u32_u24 v5, 6912, v3")
    a("v_lshl_add_u32 v5, v2, 4, v5")
    a("s_lshl_b32 s9, s3, 7")
    a("v_add_u32 v5, s9, v5")
    a("s_waitcnt lgkmcnt(0)")
    a.srd(12, 4, SZ['c']); a.srd(16, 6, SZ['wmod'])
    srd_ws(a, 24, 10, MODP, 27648)
    for i in range(9): a(f"buffer_load_ushort v{8+i}, v4, s[12:15], 0 offen offset:{64*i}")
    for i in range(9):
        a(f"s_mov_b32 s9, {i*32*6912}")
        a(f"buffer_load_dwordx4 v[{20+4*i}:{23+4*i}], v5, s[16:19], s9 offen")
    a("s_mov_b32 s29, 0xffff0000")
    a("s_mov_b32 s28, 0xbfb8aa3b")
    a("s_waitcnt vmcnt(9)")
    for i in range(9): a(f"v_lshlrev_b32 v{8+i}, 16, v{8+i}")
    for i in range(9): a(f"v_mul_f32 v{60+i}, s28, v{8+i}")
    for i in range(9): a(f"v_exp_f32 v{60+i}, v{60+i}")
    for i in range(9): a(f"v_add_f32 v{60+i}, 1.0, v{60+i}")
    for i in range(9): a(f"v_rcp_f32 v{60+i}, v{60+i}")
    for i in range(9): a(f"v_mul_f32 v{8+i}, v{8+i}, v{60+i}")
    for i in range(9): a(f"v_cvt_pk_bf16_f32 v{8+i}, v{8+i}, v{8+i}")
    for i in range(9): a(f"v_lshlrev_b32 v{8+i}, 16, v{8+i}")
    AC=72
    for i in range(9):
        a(f"s_waitcnt vmcnt({8-i})")
        for q in range(4):
            a(f"v_lshlrev_b32 v{60+2*q}, 16, v{20+4*i+q}")
            a(f"v_and_b32 v{61+2*q}, s29, v{20+4*i+q}")
        for j in range(8):
            a(f"v_mul_f32 v{AC+j}, v{60+j}, v{8+i}" if i==0 else f"v_fmac_f32 v{AC+j}, v{60+j}, v{8+i}")
    a("v_lshlrev_b32 v6, 5, v0")
    a(f"ds_write_b128 v6, v[{AC}:{AC+3}]")
    a(f"ds_write_b128 v6, v[{AC+4}:{AC+7}] offset:16")
    a("s_waitcnt lgkmcnt(0)")
    a("s_barrier")
    a("v_cmp_gt_u32 vcc, 64, v0")
    a("s_and_saveexec_b64 s[34:35], vcc")
    a(f"s_cbranch_execz {name}_end")
    a("v_lshlrev_b32 v6, 2, v0")
    for i in range(32): a(f"ds_read_b32 v{8+i}, v6 offset:{256*i}")
    a("s_waitcnt lgkmcnt(0)")
    for st in (16,8,4,2,1):
        for i in range(st): a(f"v_add_f32 v{8+i}, v{8+i}, v{8+i+st}")
    a("s_mul_i32 s9, s8, 13824")
    a("s_lshl_b32 s3, s3, 8")
    a("s_add_u32 s9, s9, s3")
    a("buffer_store_dword v8, v6, s[24:27], s9 offen")
    a.label(f"{name}_end")
    a("s_endpgm")
    return kernel_desc(name, 256+64, 256, 40)

K2_LDS=5*2304+2*9*64
def k2(a, name):
    kernel_begin(a, name)
    a("s_cmp_ge_u32 s2, 256")
    a(f"s_cbranch_scc1 {name}_end")
    a(f"s_load_dwordx2 s[4:5], s[0:1], {KA['q']}")
    a(f"s_load_dwordx2 s[10:11], s[0:1], {KA['ws']}")
    a("v_and_b32 v1, 7, v0")
    a("v_lshrrev_b32 v2, 3, v0")
    a("s_lshl_b32 s3, s2, 3")
    a("v_add_u32 v3, s3, v1")
    a("v_mul_u32_u24 v4, 1152, v3")
    a("v_lshl_add_u32 v4, v2, 4, v4")
    a("s_lshr_b32 s6, s2, 1")
    a("s_mul_i32 s6, s6, 18432")
    a("v_and_b32 v3, 15, v3")
    a("v_lshlrev_b32 v5, 8, v2")
    a("v_lshl_add_u32 v6, v3, 4, v5")
    a("v_lshl_add_u32 v5, v3, 3, v5")
    a("v_lshlrev_b32 v7, 2, v0")
    a("v_lshrrev_b32 v8, 6, v0")
    a("s_waitcnt lgkmcnt(0)")
    a.srd(12, 4, SZ['q'])
    srd_ws(a, 16, 10, YO, TSZ); srd_ws(a, 20, 10, MODP, 27648); srd_ws(a, 24, 10, H2, TSZ); srd_ws(a, 28, 10, X1, TSZ)
    a("v_readfirstlane_b32 s33, v8")
    a("buffer_load_dwordx4 v[12:15], v4, s[12:15], 0 offen")
    a("s_mov_b32 s7, 13824")
    for v in range(5):
        a(f"s_mov_b32 s8, {v*2304}")
        a(f"buffer_load_dword v{20+v}, v7, s[20:23], s8 offen")
        a(f"s_mov_b32 s8, {v*2304+13824}")
        a(f"buffer_load_dword v{25+v}, v7, s[20:23], s8 offen")
    a("buffer_load_dwordx2 v[16:17], v5, s[16:19], s6 offen")
    a("buffer_load_dwordx2 v[18:19], v5, s[16:19], s6 offen offset:128")
    a("s_mov_b32 s29+0, 0".replace("+0","") if False else "s_mov_b32 s34, 0xffff0000")
    Q=32; Yv=40; S=48
    def unpack(dst, src, n=4):
        for q in range(n):
            a(f"v_lshlrev_b32 v{dst+2*q}, 16, v{src+q}")
            a(f"v_and_b32 v{dst+2*q+1}, s34, v{src+q}")
    def stats(src, slot):
        a(f"v_add_f32 v{S}, v{src}, v{src+1}")
        a(f"v_mul_f32 v{S+1}, v{src}, v{src}")
        for j in range(1,8):
            if j>1: a(f"v_add_f32 v{S}, v{S}, v{src+j}")
            a(f"v_fmac_f32 v{S+1}, v{src+j}, v{src+j}")
        for z in range(2): a(f"v_add_f32 v{S+z}, v{S+z}, v{S+z} row_ror:8")
        for pl in ("v_permlane16_swap_b32","v_permlane32_swap_b32"):
            for z in range(2): a(f"v_mov_b32 v{S+2+z}, v{S+z}")
            for z in range(2): a(f"{pl} v{S+z}, v{S+2+z}")
            for z in range(2): a(f"v_add_f32 v{S+z}, v{S+z}, v{S+2+z}")
        base=5*2304+slot*9*64
        a(f"s_lshl_b32 s8, s33, 6")
        a(f"v_lshl_add_u32 v9, v1, 3, s8")
        a(f"ds_write_b64 v9, v[{S}:{S+1}] offset:{base}")
    def stats_finish(slot):
        base=5*2304+slot*9*64
        a("v_lshlrev_b32 v9, 3, v1")
        for w in range(9): a(f"ds_read_b64 v[{S+4+2*w}:{S+5+2*w}], v9 offset:{base+64*w}")
        a("s_waitcnt lgkmcnt(0)")
        for z in range(2):
            for w in range(1,9): a(f"v_add_f32 v{S+4+z}, v{S+4+z}, v{S+4+2*w+z}")
        a("s_mov_b32 s8, 0x3ae38e39")
        a(f"v_mul_f32 v{S}, s8, v{S+4}")
        a(f"v_mul_f32 v{S+1}, s8, v{S+5}")
        a(f"v_fma_f32 v{S+1}, -v{S}, v{S}, v{S+1}")
        a(f"v_max_f32 v{S+1}, 0, v{S+1}")
        a(f"v_add_f32 v{S+1}, 0x3727c5ac, v{S+1}")
        a(f"v_rsq_f32 v{S+1}, v{S+1}")
    a("s_waitcnt vmcnt(12)")
    unpack(Q, 12)
    stats(Q, 0)
    a("s_waitcnt vmcnt(2)")
    for v in range(5):
        a(f"v_add_f32 v{20+v}, v{20+v}, v{25+v}")
        a(f"v_cvt_pk_bf16_f32 v{20+v}, v{20+v}, v{20+v}")
        a(f"v_lshlrev_b32 v{20+v}, 16, v{20+v}")
        if v in (1,4):
            a(f"v_add_f32 v{20+v}, 1.0, v{20+v}")
            a(f"v_cvt_pk_bf16_f32 v{20+v}, v{20+v}, v{20+v}")
            a(f"v_lshlrev_b32 v{20+v}, 16, v{20+v}")
        a(f"ds_write_b32 v7, v{20+v} offset:{v*2304}")
    a("s_waitcnt lgkmcnt(0)")
    a("s_barrier")
    M=72
    a("v_lshlrev_b32 v10, 5, v2")
    for v in range(5):
        a(f"ds_read_b128 v[{M+8*v}:{M+8*v+3}], v10 offset:{v*2304}")
        a(f"ds_read_b128 v[{M+8*v+4}:{M+8*v+7}], v10 offset:{v*2304+16}")
    stats_finish(0)
    a("s_waitcnt vmcnt(0)")
    unpack(Yv, 16)
    H=20
    for j in range(8): a(f"v_sub_f32 v{H+j}, v{Q+j}, v{S}")
    for j in range(8): a(f"v_mul_f32 v{H+j}, v{H+j}, v{S+1}")
    for j in range(8): a(f"v_fma_f32 v{H+j}, v{H+j}, v{M+8+j}, v{M+j}")
    for j in range(8): a(f"v_mul_f32 v{H+j}, v{H+j}, v{Yv+j}")
    for j in range(8): a(f"v_fma_f32 v{H+j}, v{H+j}, v{M+16+j}, v{Q+j}")
    for q in range(4): a(f"v_cvt_pk_bf16_f32 v{12+q}, v{H+2*q}, v{H+2*q+1}")
    a("buffer_store_dwordx2 v[12:13], v5, s[28:31], s6 offen")
    a("buffer_store_dwordx2 v[14:15], v5, s[28:31], s6 offen offset:128")
    unpack(Q, 12)
    stats(Q, 1)
    a("s_waitcnt lgkmcnt(0)")
    a("s_barrier")
    stats_finish(1)
    for j in range(8): a(f"v_sub_f32 v{H+j}, v{Q+j}, v{S}")
    for j in range(8): a(f"v_mul_f32 v{H+j}, v{H+j}, v{S+1}")
    for j in range(8): a(f"v_fma_f32 v{H+j}, v{H+j}, v{M+32+j}, v{M+24+j}")
    for q in range(4): a(f"v_cvt_pk_bf16_f32 v{16+q}, v{H+2*q}, v{H+2*q+1}")
    a("buffer_store_dwordx4 v[16:19], v6, s[24:27], s6 offen")
    a.label(f"{name}_end")
    a("s_endpgm")
    return kernel_desc(name, 112, 112, 40)
```

```python
import sys
from asmlib import *
from hazard import fix
import k_pre, k_ffn
def build(kernels, path, verbose=False):
    heads=[]; descs=[]; body=""; seen=set()
    for fn,name,grid,block,lds in kernels:
        heads.append(f"@launch kernel={name} grid=({grid},1,1) block=({block},1,1) lds={lds}")
        if name in seen: continue
        seen.add(name)
        a=A(); A.kidx=len(seen)-1
        d=fn(a,name)
        vb=[]
        lines,n=fix(a.l, vb)
        print(name, "instr", len(lines), "hazard nops", n)
        if verbose:
            for x in vb: print("   ",x)
        body+="\n".join(lines)+"\n"
        descs.append(d)
    open(path,"w").write(finish(heads, body, descs))
ALL=[(k_pre.k0,"k0_kernel",288,256,0),(k_pre.k1,"k1_kernel",252,256,k_pre.K1_LDS),(k_pre.k2,"k2_kernel",256,576,k_pre.K2_LDS),
     (k_ffn.k3,"k3_kernel",256,256,k_ffn.K3_LDS),(k_ffn.k4,"k4_kernel",256,256,k_ffn.K4_LDS),(k_ffn.k5,"k5_kernel",256,576,0)]
if __name__=="__main__":
    build(ALL, "full.s", verbose=len(sys.argv)>1)
    A.STAMP=True
    build(ALL, "full_st.s")
```

```python
from gen import *
def empty(a,name):
    kernel_begin(a,name); a("s_endpgm"); return kernel_desc(name,8,8,16)
E1=(empty,"e_kernel",1,64,0); E2=(empty,"e_kernel",256,256,0)
build(ALL+[E1]*4,"var_b.s")
build(ALL+[E2]*4,"var_c.s")
build(ALL[:4]+[ALL[3]]+ALL[4:],"var_d.s")
build(ALL[:5]+[ALL[4]]+ALL[5:],"var_e.s")
build(ALL[:3]+ALL,"var_f.s")
```

```python
KN = "adaLN_cond__ssm_conv_h3__glu_gated_geglu__prompt_kernel"
KA = dict(q=0,k=8,v=16,shift=24,ssmk=32,ssmD=40,bx=48,wg=56,wu=64,wd=72,c=80,wmod=88,out=96,dbg=104,ws=112)
SZ = dict(q=2359296,k=2359296,v=2359296,shift=4608,ssmk=2359296,ssmD=1152,bx=2359296,wg=5308416,wu=5308416,wd=5308416,c=1152,wmod=3981312,out=2359296,dbg=256,ws=268435456)

class A:
    def __init__(self):
        self.l = []
        self.uid = 0
    def __call__(self, s=""):
        for line in s.split("\n"):
            self.l.append("    " + line.strip() if line.strip() and not line.strip().endswith(":") else line.strip())
    def label(self, name):
        self.l.append(name + ":")
    def newlabel(self, p="L"):
        self.uid += 1
        return f"{p}_{self.uid}"
    def text(self):
        return "\n".join(self.l) + "\n"
    STAMP=False
    kidx=0
    def stamp(self, i, wait=False):
        if not A.STAMP: return
        self(f"s_memrealtime s[{70+4*i}:{71+4*i}]")
        self(f"s_memtime s[{72+4*i}:{73+4*i}]")
        if wait: self("s_waitcnt lgkmcnt(0)")
    def stamp_flush(self, last, v=1):
        if not A.STAMP: return
        self("s_waitcnt vmcnt(0)")
        self.stamp(last)
        self(f"s_load_dwordx2 s[4:5], s[0:1], {KA['ws']}")
        self("s_waitcnt lgkmcnt(0)")
        self("s_mov_b64 exec, -1")
        self(f"s_add_u32 s4, s4, {0x8000000 + A.kidx*0x100000}")
        self("s_addc_u32 s5, s5, 0")
        self("s_and_b32 s5, s5, 0xffff")
        self("s_mov_b32 s6, 0x100000")
        self("s_mov_b32 s7, 0x00020000")
        self(f"v_mov_b32 v{v}, 0")
        for j in range(2*(last+1)): self(f"v_writelane_b32 v{v}, s{70+2*j}, {j}")
        self(f"v_lshlrev_b32 v{v+1}, 2, v0")
        self("s_mul_i32 s3, s2, 2304")
        self(f"buffer_store_dword v{v}, v{v+1}, s[4:7], s3 offen")
    def srd(self, s, base, size):
        self(f"s_mov_b32 s{s}, s{base}")
        self(f"s_and_b32 s{s+1}, s{base+1}, 0xffff")
        self(f"s_mov_b32 s{s+2}, {size}")
        self(f"s_mov_b32 s{s+3}, 0x00020000")

def kernel_begin(a, name):
    a.l.append(f".globl {name}")
    a.l.append(".p2align 8")
    a.l.append(f".type {name},@function")
    a.l.append(f"{name}:")

def kernel_desc(name, vgpr, accum, sgpr=102, wgy=False):
    if A.STAMP: sgpr=102
    s = f""".amdhsa_kernel {name}
  .amdhsa_next_free_vgpr {vgpr}
  .amdhsa_next_free_sgpr {sgpr}
  .amdhsa_accum_offset {accum}
  .amdhsa_group_segment_fixed_size 0
  .amdhsa_kernarg_size 120
  .amdhsa_user_sgpr_count 2
  .amdhsa_user_sgpr_kernarg_segment_ptr 1
  .amdhsa_system_sgpr_workgroup_id_x 1
"""
    if wgy: s += "  .amdhsa_system_sgpr_workgroup_id_y 1\n"
    s += "  .amdhsa_float_denorm_mode_32 3\n"
    s += ".end_amdhsa_kernel\n"
    return s

def finish(header_lines, body, descs):
    s = "".join(f"; {h}\n" for h in header_lines)
    s += '.amdgcn_target "amdgcn-amd-amdhsa--gfx950"\n.text\n'
    s += body
    s += '.section .rodata,"a"\n'
    for d in descs:
        s += ".p2align 6\n" + d
    return s
```

```python
from asmlib import *
from layout import *
OPT=dict(ld="nt", st="sc1", pf="", pfon=1)

def srd_ws(a, s, wsreg, off, size):
    a(f"s_add_u32 s{s}, s{wsreg}, {off}")
    a(f"s_addc_u32 s{s+1}, s{wsreg+1}, 0")
    a(f"s_and_b32 s{s+1}, s{s+1}, 0xffff")
    a(f"s_mov_b32 s{s+2}, {size}")
    a(f"s_mov_b32 s{s+3}, 0x00020000")

def k0pf(a):
    for s_,n in ((40,'ssmk'),(44,'wmod'),(48,'q')):
        a(f"s_and_b32 s{s_+1}, s{s_+1}, 0xffff"); a(f"s_mov_b32 s{s_+2}, {SZ[n]}"); a(f"s_mov_b32 s{s_+3}, 0x00020000")
    a("s_and_b32 s3, s2, 7"); a("s_lshr_b32 s31, s2, 3")
    a("v_lshl_add_u32 v84, s31, 8, v0")
    a("s_mov_b32 s31, 0x7ff00000")
    a(f"s_mul_i32 s30, s3, {2304*128}")
    a("v_lshl_add_u32 v85, v84, 7, s30")
    a("v_cmp_gt_u32 vcc, 2304, v84")
    a("v_mov_b32 v87, s31")
    a("v_cndmask_b32 v85, v87, v85, vcc")
    a("buffer_load_dword v85, v85, s[40:43], 0 offen")
    a("v_subrev_u32 v86, 2304, v84")
    a("v_cmp_gt_u32 vcc, 3888, v86")
    a(f"s_mul_i32 s30, s3, {3888*128}")
    a("v_lshl_add_u32 v86, v86, 7, s30")
    a("v_cndmask_b32 v86, v87, v86, vcc")
    a("buffer_load_dword v86, v86, s[44:47], 0 offen")
    a("v_subrev_u32 v84, 6192, v84")
    a("v_cmp_gt_u32 vcc, 2304, v84")
    a("s_mov_b32 s30, 14913081")
    a("v_mul_hi_u32 v83, v84, s30")
    a(f"v_mul_u32_u24 v83, {2304-288}, v83")
    a("v_add_u32 v84, v84, v83")
    a(f"s_mul_i32 s30, s3, {288*128}")
    a("v_lshl_add_u32 v84, v84, 7, s30")
    a("v_cndmask_b32 v84, v87, v84, vcc")
    a("buffer_load_dword v84, v84, s[48:51], 0 offen")

def k0(a, name):
    LD=OPT['ld']; ST=OPT['st']
    kernel_begin(a, name)
    a("s_cmp_ge_u32 s2, 288")
    a(f"s_cbranch_scc1 {name}_end")
    a.stamp(0)
    a(f"s_load_dwordx4 s[4:7], s[0:1], {KA['k']}")
    a(f"s_load_dwordx2 s[8:9], s[0:1], {KA['shift']}")
    a(f"s_load_dwordx2 s[10:11], s[0:1], {KA['ws']}")
    a(f"s_load_dwordx2 s[40:41], s[0:1], {KA['ssmk']}")
    a(f"s_load_dwordx2 s[44:45], s[0:1], {KA['wmod']}")
    a(f"s_load_dwordx2 s[48:49], s[0:1], {KA['q']}")
    a("v_lshl_add_u32 v1, s2, 8, v0")
    a("s_mov_b32 s3, 14913081")
    a("v_mul_hi_u32 v2, v1, s3")
    a("v_mul_u32_u24 v3, 288, v2")
    a("v_sub_u32 v3, v1, v3")
    a("v_mul_u32_u24 v4, 9216, v2")
    a("v_lshl_add_u32 v5, v3, 2, v4")
    a("v_subrev_u32 v6, 3456, v5")
    a("v_lshlrev_b32 v7, 4, v3")
    a("v_lshl_add_u32 v8, v3, 5, v4")
    a("v_lshlrev_b32 v9, 4, v1")
    for i in range(4): a(f"v_mov_b32 v{76+i}, 0")
    a("s_mov_b32 s28, 4608")
    a("s_waitcnt lgkmcnt(0)")
    a.srd(12, 4, SZ['k']); a.srd(16, 6, SZ['v']); a.srd(20, 8, SZ['shift'])
    K=10; V=22; W=32
    a(f"buffer_load_dwordx4 v[{W}:{W+3}], v7, s[20:23], 0 offen")
    for i in range(3): a(f"buffer_load_dword v{K+i}, v6, s[12:15], 0 offen offset:{i*1152} {LD}")
    for r in range(8):
        so = "0" if r<4 else "s28"
        a(f"buffer_load_dword v{K+3+r}, v5, s[12:15], {so} offen offset:{(r%4)*1152} {LD}")
    for r in range(8):
        so = "0" if r<4 else "s28"
        a(f"buffer_load_dword v{V+r}, v5, s[16:19], {so} offen offset:{(r%4)*1152} {LD}")
    srd_ws(a, 24, 10, XT, TSZ)
    srd_ws(a, 32, 10, FLG, FLGSZ)
    a("buffer_store_dwordx4 v[76:79], v9, s[32:35], 0 offen sc1")
    NCL=1
    if OPT.get('sent'):
        srd_ws(a, 32, 10, MODF, 13824)
        for i in range(4): a(f"v_mov_b32 v{80+i}, -1")
        a("buffer_store_dwordx4 v[80:83], v9, s[32:35], 0 offen sc1")
        srd_ws(a, 36, 10, YO, TSZ)
        a(f"s_mov_b32 s30, {TSZ//2}")
        a("buffer_store_dwordx4 v[80:83], v9, s[36:39], 0 offen sc1")
        a("buffer_store_dwordx4 v[80:83], v9, s[36:39], s30 offen sc1")
        NCL=4
    if OPT.get('k0pf')==1:
        k0pf(a); NCL+=3
    KF=36; WF=48; O=52; P=60; T=68
    a("s_mov_b32 s29, 0xffff0000")
    a.stamp(1)
    a(f"s_waitcnt vmcnt({8+NCL})")
    a.stamp(2)
    for ch in range(2):
        for j in range(4):
            src=W+2*ch+(j>>1)
            a(f"v_and_b32 v{WF+j}, s29, v{src}" if j&1 else f"v_lshlrev_b32 v{WF+j}, 16, v{src}")
        for i in range(11):
            a(f"v_and_b32 v{KF+i}, s29, v{K+i}" if ch else f"v_lshlrev_b32 v{KF+i}, 16, v{K+i}")
        for r in range(8): a(f"v_mul_f32 v{O+r}, v{KF+r}, v{WF+3}")
        for j in (2,1,0):
            for r in range(8): a(f"v_fmac_f32 v{O+r}, v{KF+r+3-j}, v{WF+j}")
        if ch==0: a(f"s_waitcnt vmcnt({NCL})")
        for r in range(8):
            a(f"v_and_b32 v{T+r}, s29, v{V+r}" if ch else f"v_lshlrev_b32 v{T+r}, 16, v{V+r}")
        for r in range(8): a(f"v_mul_f32 v{O+r}, v{O+r}, v{T+r}")
        for q in range(4): a(f"v_cvt_pk_bf16_f32 v{P+4*ch+q}, v{O+7-2*q}, v{O+6-2*q}")
    a("v_add_u32 v9, 16, v8")
    for q in range(4): a(f"v_permlane32_swap_b32 v{P+q}, v{P+4+q}")
    a("v_permlane32_swap_b32 v8, v9")
    for ch in range(2):
        a(f"buffer_store_dwordx4 v[{P+4*ch}:{P+4*ch+3}], v{8+ch}, s[24:27], 0 offen {ST}")
    if OPT.get('k0pf')==2: k0pf(a)
    a.stamp(3)
    a.stamp_flush(4)
    a.label(f"{name}_end")
    a("s_endpgm")
    return kernel_desc(name, 88, 88, 56)

CS=4160; HB=0; XS=4640; XB=16*CS; K1_LDS=XB+4*XS

def prefetch(a, vt, dst):
    if not OPT['pfon']: return
    PF=OPT['pf']
    a("s_lshr_b32 s8, s2, 3")
    a(f"v_lshl_add_u32 v{vt}, s8, 8, v0")
    a("s_mov_b32 s9, 477218589")
    a(f"v_mul_hi_u32 v{vt+1}, v{vt}, s9")
    a(f"v_mul_u32_u24 v{vt+2}, 9, v{vt+1}")
    a(f"v_sub_u32 v{vt}, v{vt}, v{vt+2}")
    a(f"v_lshlrev_b32 v{vt}, 7, v{vt}")
    a("s_and_b32 s48, s2, 7")
    a("s_mul_i32 s9, s48, 1152")
    a(f"v_mul_u32_u24 v{vt+2}, 9216, v{vt+1}")
    a(f"v_add3_u32 v{vt+2}, v{vt+2}, v{vt}, s9")
    a(f"buffer_load_dword v{dst}, v{vt+2}, s[36:39], 0 offen {PF}")
    a(f"buffer_load_dword v{dst+1}, v{vt+2}, s[40:43], 0 offen {PF}")
    a(f"v_lshrrev_b32 v{vt+2}, 5, v{vt+1}")
    a(f"v_lshlrev_b32 v{vt+2}, 8, v{vt+2}")
    a(f"v_and_b32 v{vt+1}, 31, v{vt+1}")
    a("s_lshl_b32 s9, s48, 5")
    a(f"v_add3_u32 v{vt+1}, v{vt+1}, v{vt+2}, s9")
    a(f"v_mul_u32_u24 v{vt+1}, 1152, v{vt+1}")
    a(f"v_add_u32 v{vt+1}, v{vt+1}, v{vt}")
    a(f"buffer_load_dword v{dst+2}, v{vt+1}, s[44:47], 0 offen {PF}")

def k1(a, name):
    LD=OPT['ld']; ST=OPT['st']
    kernel_begin(a, name)
    a("s_cmp_ge_u32 s2, 252")
    a(f"s_cbranch_scc1 {name}_end")
    a.stamp(0)
    a(f"s_load_dwordx2 s[10:11], s[0:1], {KA['ws']}")
    a(f"s_load_dwordx4 s[52:55], s[0:1], {KA['wg']}")
    a(f"s_load_dwordx2 s[56:57], s[0:1], {KA['q']}")
    a("s_cmp_ge_u32 s2, 144")
    a(f"s_cbranch_scc1 {name}_mod")
    a(f"s_load_dwordx4 s[4:7], s[0:1], {KA['ssmk']}")
    a("v_lshrrev_b32 v1, 6, v0")
    a("s_and_b32 s3, s2, 7")
    a("s_mul_i32 s3, s3, 18")
    a("s_lshr_b32 s8, s2, 3")
    a("v_readfirstlane_b32 s30, v1")
    a("s_add_u32 s3, s3, s8")
    a("v_and_b32 v2, 63, v0")
    a("s_lshl_b32 s8, s3, 2")
    a("s_add_u32 s31, s8, s30")
    a("v_lshrrev_b32 v3, 2, v0")
    a("v_and_b32 v4, 3, v0")
    a("v_mul_u32_u24 v5, 9216, v3")
    a("v_add_u32 v6, s8, v4")
    a("v_lshl_add_u32 v5, v6, 4, v5")
    a(f"v_mul_u32_u24 v6, {XS}, v4")
    a("v_lshl_add_u32 v6, v3, 4, v6")
    a(f"v_add_u32 v6, {XB+512}, v6")
    a("v_lshlrev_b32 v7, 4, v2")
    a("v_subrev_u32 v9, 16, v7")
    a("s_lshl_b32 s9, s31, 1")
    a("v_mov_b32 v10, s9")
    a("s_waitcnt lgkmcnt(0)")
    a("s_lshl_b32 s9, s31, 12")
    a("s_add_u32 s16, s4, s9")
    a("s_addc_u32 s17, s5, 0")
    a("s_and_b32 s17, s17, 0xffff")
    a("s_mov_b32 s18, 4096")
    a("s_mov_b32 s19, 0x00020000")
    XL=16; HL=32
    for i in range(4):
        a(f"buffer_load_dwordx4 v[{HL+8*i}:{HL+8*i+3}], v7, s[16:19], 0 offen offset:{1024*i}")
        a(f"buffer_load_dwordx2 v[{HL+8*i+4}:{HL+8*i+5}], v7, s[16:19], 0 offen offset:{1024*i+16}")
    a(f"buffer_load_dwordx2 v[{HL+36}:{HL+37}], v9, s[16:19], 0 offen")
    srd_ws(a, 12, 10, XT, TSZ)
    a.srd(20, 6, SZ['ssmD'])
    for i in range(4):
        a(f"s_mov_b32 s9, {i*64*9216}")
        a(f"buffer_load_dwordx4 v[{XL+4*i}:{XL+4*i+3}], v5, s[12:15], s9 offen")
    a("buffer_load_ushort v11, v10, s[20:23], 0 offen")
    srd_ws(a, 24, 10, YO, TSZ)
    a.srd(36, 52, SZ['wg']); a.srd(40, 54, SZ['wu']); a.srd(44, 56, SZ['q'])
    for i in range(4): a(f"v_mov_b32 v{HL+32+i}, 0")
    a(f"s_mul_i32 s9, s30, {XS}")
    a(f"s_add_u32 s9, s9, {XB}")
    a("v_add_u32 v12, s9, v7")
    a("s_mov_b64 s[34:35], exec")
    a("s_mov_b32 exec_hi, 0")
    a(f"ds_write_b128 v12, v[{HL+32}:{HL+35}]")
    a("s_mov_b64 exec, s[34:35]")
    a(f"s_mul_i32 s9, s30, {4*CS}")
    a("v_add_u32 v13, s9, v7")
    a("v_and_b32 v14, 15, v2")
    a("v_lshrrev_b32 v15, 4, v2")
    a("v_lshlrev_b32 v3, 1, v14")
    a("v_sub_u32 v3, v3, v15")
    a("v_add_u32 v3, 5, v3")
    a(f"s_mul_i32 s9, s30, {XS}")
    a(f"s_add_u32 s9, s9, {XB}")
    a("v_lshl_add_u32 v3, v3, 4, s9")
    a("v_add_u32 v4, 1, v14")
    a("v_and_b32 v5, 3, v4")
    a("v_sub_u32 v4, v4, v5")
    a("v_lshl_add_u32 v4, v15, 3, v4")
    a("v_lshlrev_b32 v4, 1, v4")
    a(f"v_mul_u32_u24 v5, {CS}, v5")
    a(f"s_mul_i32 s9, s30, {4*CS}")
    a("v_add3_u32 v4, v4, v5, s9")
    a("v_lshlrev_b32 v12, 9, v15")
    a("v_lshl_add_u32 v12, v14, 3, v12")
    a("s_lshl_b32 s9, s30, 1")
    a("v_add_u32 v12, s9, v12")
    T=72
    def copies(base, off, tset):
        t=T+tset*12
        a(f"ds_write_b128 v13, v[{base}:{base+3}] offset:{off}")
        for q in range(4): a(f"v_alignbit_b32 v{t+q}, v{base+q+1}, v{base+q}, 16")
        a(f"ds_write_b128 v13, v[{t}:{t+3}] offset:{off+CS}")
        for q in range(4): a(f"v_mov_b32 v{t+4+q}, v{base+q+1}")
        a(f"ds_write_b128 v13, v[{t+4}:{t+7}] offset:{off+2*CS}")
        for q in range(4): a(f"v_alignbit_b32 v{t+8+q}, v{base+q+2}, v{base+q+1}, 16")
        a(f"ds_write_b128 v13, v[{t+8}:{t+11}] offset:{off+3*CS}")
    a.stamp(1)
    for i in range(4):
        a(f"s_waitcnt vmcnt({12-2*i})")
        if i==0: a.stamp(2)
        copies(HL+8*i, 32+1024*i, i&1)
    a("s_waitcnt vmcnt(5)")
    a("s_mov_b64 exec, 3")
    copies(HL+32, 0, 0)
    a("s_mov_b64 exec, s[34:35]")
    for i in range(4):
        a(f"s_waitcnt vmcnt({4-i})")
        a(f"ds_write_b128 v6, v[{XL+4*i}:{XL+4*i+3}] offset:{1024*i}")
    a("s_waitcnt vmcnt(0)")
    DF=96
    a("v_lshl_add_u32 v5, v15, 3, v14")
    a("v_sub_u32 v5, 15, v5")
    a("v_and_b32 v7, 1, v5")
    a("v_lshlrev_b32 v7, 4, v7")
    a("v_lshlrev_b32 v7, v7, v11")
    a("v_ashrrev_i32 v5, 1, v5")
    for q in range(4):
        a(f"v_cmp_eq_u32 s[{58+2*q}:{59+2*q}], {q}, v5")
    prefetch(a, 204, 200)
    for q in range(4):
        a(f"v_cndmask_b32 v{DF+q}, 0, v7, s[{58+2*q}:{59+2*q}]")
    a("s_waitcnt lgkmcnt(0)")
    a("s_barrier")
    a.stamp(3)
    ACC=100
    def xreg(buf,w):
        return f"v[{132+4*w}:{132+4*w+3}]" if buf==0 else f"a[{4*w}:{4*w+3}]"
    def hreg(buf,u,half=None):
        b = 164+4*u if buf==0 else 32+4*u
        p = "v" if buf==0 else "a"
        if half is None: return f"{p}[{b}:{b+3}]"
        return f"{p}[{b+2*half}:{b+2*half+1}]"
    def reads(p):
        buf=p&1; L=[]
        for z in range(8):
            L.append(f"ds_read_b128 {xreg(buf,7-z)}, v3 offset:{512*(7-z)+64*(7-p)}")
            L.append(f"ds_read_b64 {hreg(buf,z,0)}, v4 offset:{512*z+64*p}")
            L.append(f"ds_read_b64 {hreg(buf,z,1)}, v4 offset:{512*z+64*p+8}")
        return L
    for x in reads(0): a(x)
    a("s_waitcnt lgkmcnt(0)")
    for p in range(8):
        buf=p&1
        nxt = reads(p+1) if p<7 else []
        seq=[]
        if p==0:
            for c in range(8): seq.append((c, xreg(0,c), f"v[{DF}:{DF+3}]", True))
        for c in range(7,-1,-1):
            for u in range(c+1): seq.append((c, xreg(buf,c-u), hreg(buf,u), False))
        for n,(c,A_,B_,first) in enumerate(seq):
            acc=f"v[{ACC+4*c}:{ACC+4*c+3}]"
            a(f"v_mfma_f32_16x16x32_bf16 {acc}, {A_}, {B_}, {'0' if first else acc}")
            if n==len(seq)-1 and p<7: a("s_waitcnt lgkmcnt(0)")
            if nxt: a(nxt.pop(0))
        assert not nxt
    a.stamp(4)
    a("s_barrier")
    for c in range(7,-1,-1):
        a(f"v_cvt_pk_bf16_f32 v{16+2*c}, v{ACC+4*c}, v{ACC+4*c+1}")
        a(f"v_cvt_pk_bf16_f32 v{17+2*c}, v{ACC+4*c+2}, v{ACC+4*c+3}")
        a(f"ds_write_b16 v12, v{16+2*c} offset:{2048*c}")
        a(f"ds_write_b16_d16_hi v12, v{16+2*c} offset:{2048*c+128}")
        a(f"ds_write_b16 v12, v{17+2*c} offset:{2048*c+256}")
        a(f"ds_write_b16_d16_hi v12, v{17+2*c} offset:{2048*c+384}")
    a("v_lshlrev_b32 v5, 4, v0")
    a("v_lshrrev_b32 v6, 3, v0")
    a("v_mul_u32_u24 v6, 18432, v6")
    a("v_and_b32 v7, 7, v0")
    a("v_lshl_add_u32 v6, v7, 4, v6")
    a("s_lshl_b32 s9, s3, 7")
    a("v_add_u32 v6, s9, v6")
    a("s_waitcnt lgkmcnt(0)")
    a("s_barrier")
    for i in range(4): a(f"ds_read_b128 v[{32+4*i}:{35+4*i}], v5 offset:{4096*i}")
    for i in range(4):
        a(f"s_mov_b32 s9, {i*32*18432}")
        a(f"s_waitcnt lgkmcnt({3-i})")
        a(f"buffer_store_dwordx4 v[{32+4*i}:{35+4*i}], v6, s[24:27], s9 offen {ST}")
    a.stamp(5)
    a.stamp_flush(6)
    a("s_endpgm")
    a.label(f"{name}_mod")
    a(f"s_load_dwordx4 s[4:7], s[0:1], {KA['c']}")
    a("s_sub_u32 s3, s2, 144")
    a("s_and_b32 s8, s3, 7")
    a("s_lshr_b32 s9, s3, 4")
    a("s_lshl_b32 s9, s9, 3")
    a("s_add_u32 s8, s8, s9")
    a("s_lshl_b32 s8, s8, 1")
    a("s_bfe_u32 s9, s3, 0x10003")
    a("s_add_u32 s8, s8, s9")
    a("s_cmp_ge_u32 s3, 96")
    a("s_cselect_b32 s33, s3, s8")
    a("v_lshrrev_b32 v1, 2, v0")
    a("v_and_b32 v2, 3, v0")
    a("v_lshlrev_b32 v4, 1, v1")
    a("v_mul_u32_u24 v5, 6912, v1")
    a("v_lshl_add_u32 v5, v2, 4, v5")
    a("s_lshl_b32 s9, s33, 6")
    a("v_add_u32 v5, s9, v5")
    a("s_waitcnt lgkmcnt(0)")
    a.srd(12, 4, SZ['c']); a.srd(16, 6, SZ['wmod'])
    for i in range(9): a(f"buffer_load_ushort v{8+i}, v4, s[12:15], 0 offen offset:{128*i}")
    for i in range(9):
        a(f"s_mov_b32 s9, {i*64*6912}")
        a(f"buffer_load_dwordx4 v[{20+4*i}:{23+4*i}], v5, s[16:19], s9 offen {LD}")
    srd_ws(a, 24, 10, MODF, 13824)
    a.srd(36, 52, SZ['wg']); a.srd(40, 54, SZ['wu']); a.srd(44, 56, SZ['q'])
    a("s_mov_b32 s29, 0xffff0000")
    a("s_mov_b32 s28, 0xbfb8aa3b")
    a.stamp(1)
    a("s_waitcnt vmcnt(9)")
    a.stamp(2)
    for i in range(9): a(f"v_lshlrev_b32 v{8+i}, 16, v{8+i}")
    for i in range(9): a(f"v_mul_f32 v{60+i}, s28, v{8+i}")
    for i in range(9): a(f"v_exp_f32 v{60+i}, v{60+i}")
    for i in range(9): a(f"v_add_f32 v{60+i}, 1.0, v{60+i}")
    for i in range(9): a(f"v_rcp_f32 v{60+i}, v{60+i}")
    for i in range(9): a(f"v_mul_f32 v{8+i}, v{8+i}, v{60+i}")
    for i in range(9): a(f"v_cvt_pk_bf16_f32 v{8+i}, v{8+i}, v{8+i}")
    for i in range(9): a(f"v_lshlrev_b32 v{8+i}, 16, v{8+i}")
    AC=72
    for i in range(9):
        a(f"s_waitcnt vmcnt({8-i})")
        for q in range(4):
            a(f"v_lshlrev_b32 v{60+2*q}, 16, v{20+4*i+q}")
            a(f"v_and_b32 v{61+2*q}, s29, v{20+4*i+q}")
        for j in range(8):
            a(f"v_mul_f32 v{AC+j}, v{60+j}, v{8+i}" if i==0 else f"v_fmac_f32 v{AC+j}, v{60+j}, v{8+i}")
    prefetch(a, 84, 88)
    a("v_lshlrev_b32 v6, 5, v0")
    a(f"ds_write_b128 v6, v[{AC}:{AC+3}]")
    a(f"ds_write_b128 v6, v[{AC+4}:{AC+7}] offset:16")
    a("s_waitcnt lgkmcnt(0)")
    a("s_barrier")
    a.stamp(3); a.stamp(4); a.stamp(5); a.stamp_flush(6, 100)
    a("v_cmp_gt_u32 vcc, 64, v0")
    a("s_and_saveexec_b64 s[34:35], vcc")
    a(f"s_cbranch_execz {name}_end")
    a("v_and_b32 v6, 31, v0")
    a("v_lshlrev_b32 v6, 2, v6")
    a("v_lshrrev_b32 v7, 5, v0")
    a("v_lshl_add_u32 v7, v7, 12, v6")
    for i in range(32): a(f"ds_read_b32 v{8+i}, v7 offset:{128*i}")
    a("s_waitcnt lgkmcnt(0)")
    for st in (16,8,4,2,1):
        for i in range(st): a(f"v_add_f32 v{8+i}, v{8+i}, v{8+i+st}")
    a("v_mov_b32 v9, v8")
    a("v_permlane32_swap_b32 v8, v9")
    a("v_add_f32 v8, v8, v9")
    a("v_cvt_pk_bf16_f32 v8, v8, v8")
    a("v_lshlrev_b32 v8, 16, v8")
    a("s_sub_u32 s8, s33, 18"); a("s_cmp_lt_u32 s8, 18"); a("s_cselect_b32 s9, 1.0, 0")
    a("s_sub_u32 s8, s33, 72"); a("s_cmp_lt_u32 s8, 18"); a("s_cselect_b32 s9, 1.0, s9")
    a("v_add_f32 v8, s9, v8")
    a("v_cvt_pk_bf16_f32 v8, v8, v8")
    a("v_lshlrev_b32 v8, 16, v8")
    a("s_lshl_b32 s9, s33, 7")
    a("s_mov_b32 exec_hi, 0")
    a(f"buffer_store_dword v8, v6, s[24:27], s9 offen {ST}")
    a.label(f"{name}_end")
    a("s_endpgm")
    return kernel_desc(name, 256+64, 256, 68)
```

```python
from asmlib import *
from k_pre import XT,YO,MODP,H2,X1,HH,PART,TSZ,srd_ws
SLAB=36864
HHSZ=128*144*1024
import struct
def fbits(x): return "0x%08x"%struct.unpack("<I",struct.pack("<f",x))[0]
C0=-2*1.4426950408889634*0.7978845608028654
C1=C0*0.044715

def interleave(a, mf, prio, bulk, budget=2):
    tot=sum(c for _,c in bulk); done=0; n=len(mf)
    prio=list(prio); bulk=list(bulk)
    cap=[budget-(1 if i<len(prio) else 0) for i in range(n)]
    ctot=sum(cap); acc=0
    for i,m in enumerate(mf):
        a(m)
        if prio: a(prio.pop(0))
        acc+=cap[i]
        while bulk and (done+bulk[0][1]*0.5) <= tot*acc/max(ctot,1):
            t,c=bulk.pop(0); a(t); done+=c
    for p in prio: a(p)
    for t,c in bulk: a(t)

K3_LDS=4*SLAB
def k3(a, name):
    VA=2; VD0=10; VD=11; VH=12; VL=13; VC1=14; TMP=16; AF=32; ACC=64; HP=128
    def breg(sl,ks):
        i=(sl*18+ks)*4
        return f"a[{i}:{i+3}]" if i<256 else f"v[{224+i-256}:{224+i-256+3}]"
    kernel_begin(a, name)
    a("s_cmp_ge_u32 s2, 256")
    a(f"s_cbranch_scc1 {name}_end")
    a.stamp(0)
    a(f"s_load_dwordx4 s[4:7], s[0:1], {KA['wg']}")
    a(f"s_load_dwordx2 s[10:11], s[0:1], {KA['ws']}")
    a("v_lshrrev_b32 v1, 6, v0")
    a("s_and_b32 s3, s2, 7")
    a("s_lshr_b32 s8, s2, 3")
    a("v_readfirstlane_b32 s30, v1")
    a("s_lshr_b32 s9, s3, 2")
    a("s_lshl_b32 s9, s9, 2")
    a("s_lshr_b32 s28, s8, 3")
    a("s_add_u32 s9, s9, s28")
    a("s_and_b32 s3, s3, 3")
    a("s_and_b32 s8, s8, 7")
    a("s_and_b32 s31, s8, 1")
    a("s_lshr_b32 s8, s8, 1")
    a("s_mul_i32 s3, s3, 36")
    a("s_mul_i32 s8, s8, 9")
    a("s_add_u32 s3, s3, s8")
    a("s_add_u32 s32, s3, 4")
    a("s_mul_i32 s8, s31, 5")
    a("s_add_u32 s33, s3, s8")
    a("s_lshl_b32 s9, s9, 4")
    a("s_lshl_b32 s8, s30, 2")
    a("s_add_u32 s9, s9, s8")
    a("s_lshl_b32 s8, s31, 1")
    for sl in range(4):
        a(f"s_xor_b32 s28, s8, {sl}")
        a(f"s_add_u32 s28, s28, s9")
        a(f"s_mul_i32 s{50+sl}, s28, 18432")
        a(f"s_mul_i32 s{54+sl}, s28, 147456")
    for i in range(9): a(f"s_mov_b32 s{40+i}, {i*16*9216-(i%4)*1024}")
    a("s_mul_i32 s34, s30, 9216")
    a("v_and_b32 v15, 63, v0")
    a(f"v_lshlrev_b32 v{VL}, 4, v15")
    a("v_lshrrev_b32 v16, 2, v15")
    a("s_mul_i32 s8, s30, 144")
    a("v_add_u32 v16, s8, v16")
    a("v_mul_u32_u24 v16, 9216, v16")
    a("v_lshrrev_b32 v17, 4, v15")
    a("v_and_b32 v17, 2, v17")
    a("v_and_b32 v18, 3, v15")
    a("v_xor_b32 v17, v17, v18")
    a(f"v_lshl_add_u32 v{VD0}, v17, 4, v16")
    a("s_lshl_b32 s8, s32, 6")
    a(f"v_add_u32 v{VD}, s8, v{VD0}")
    a("v_lshrrev_b32 v16, 4, v15")
    a("v_bfe_u32 v17, v15, 2, 2")
    a("v_lshl_add_u32 v17, v16, 3, v17")
    a("v_lshlrev_b32 v17, 6, v17")
    a("v_and_b32 v18, 3, v15")
    a("v_lshl_add_u32 v17, v18, 3, v17")
    a("v_and_b32 v16, 1, v16")
    a(f"v_lshl_add_u32 v{VA}, v16, 5, v17")
    a(f"v_xor_b32 v{VA+1}, 32, v{VA}")
    for st in range(2):
        for sb in range(2):
            if st==0 and sb==0: continue
            for t in range(2): a(f"v_add_u32 v{VA+st*4+sb*2+t}, {(st*2+sb)*SLAB}, v{VA+t}")
    a(f"v_mov_b32 v{VC1}, {fbits(C1)}")
    a(f"s_mov_b32 s35, {fbits(C0)}")
    for j in range(1,5): a(f"v_add_u32 v{23+j}, {4096*j}, v{VL}")
    a("s_waitcnt lgkmcnt(0)")
    a.srd(12, 4, SZ['wg']); a.srd(16, 6, SZ['wu'])
    srd_ws(a, 20, 10, H2, TSZ); srd_ws(a, 24, 10, HH, HHSZ)
    def dma(stage_sgpr_or_const):
        L=[]
        for sb in range(2):
            for i in range(9):
                srd=12+4*sb
                t=""
                if i%4==0: t=f"s_add_u32 m0, {stage_sgpr_or_const}, {sb*SLAB+i*1024}\ns_nop 0\n"
                L.append((t+f"buffer_load_dwordx4 v{VD}, s[{srd}:{srd+3}], s{40+i} offen offset:{(i%4)*1024} lds", 3 if t else 1))
        return L
    def bload(sl,ks):
        v = VL if ks<4 else 23+ks//4
        return f"buffer_load_dwordx4 {breg(sl,ks)}, v{v}, s[20:23], s{50+sl} offen offset:{(ks%4)*1024}"
    def areads(stage,t,n,buf):
        L=[]
        for sb in range(2):
            for j in range(2):
                d=AF+buf*16+(sb*2+j)*4
                for hf in range(2):
                    L.append(f"ds_read_b64_tr_b16 v[{d+2*hf}:{d+2*hf+1}], v{VA+stage*4+sb*2+t} offset:{(2*n+j)*2048+hf*256}")
        return L
    def mfmas(t,n,buf,slots):
        L=[]
        for sb in range(2):
            for sl in slots:
                acc=ACC+t*32+sb*16+sl*4
                for j in range(2):
                    d=AF+buf*16+(sb*2+j)*4
                    c="0" if (n==0 and j==0) else f"v[{acc}:{acc+3}]"
                    L.append(f"v_mfma_f32_16x16x32_bf16 v[{acc}:{acc+3}], v[{d}:{d+3}], {breg(sl,2*n+j)}, {c}")
        return L
    def gelu(t,slots,store):
        L=[]
        for bi,sl in enumerate(slots):
            G=ACC+t*32+sl*4; U=G+16; T=TMP+(bi&1)*4
            for r in range(4): L.append((f"v_mul_f32 v{T+r}, v{G+r}, v{G+r}",1))
            for r in range(4): L.append((f"v_fma_f32 v{T+r}, v{T+r}, v{VC1}, s35",1))
            for r in range(4): L.append((f"v_mul_f32 v{T+r}, v{T+r}, v{G+r}",1))
            for r in range(4): L.append((f"v_exp_f32 v{T+r}, v{T+r}",2))
            for r in range(4): L.append((f"v_mul_f32 v{U+r}, v{U+r}, v{G+r}",1))
            for r in range(4): L.append((f"v_add_f32 v{T+r}, 1.0, v{T+r}",1))
            for r in range(4): L.append((f"v_rcp_f32 v{T+r}, v{T+r}",2))
            L.append((f"v_mul_f32 v{U}, v{U}, v{T}",1)); L.append((f"v_mul_f32 v{U+1}, v{U+1}, v{T+1}",1))
            L.append((f"v_mul_f32 v{U+2}, v{U+2}, v{T+2}",1)); L.append((f"v_mul_f32 v{U+3}, v{U+3}, v{T+3}",1))
            for q in range(2): L.append((f"v_cvt_pk_bf16_f32 v{HP+sl*4+2*t+q}, v{U+2*q}, v{U+2*q+1}",1))
            if store: L.append((f"buffer_store_dwordx4 v[{HP+sl*4}:{HP+sl*4+3}], v{VH}, s[24:27], s{58+sl} offen",1))
        return L
    def split(L,n):
        tot=sum(c for _,c in L); out=[[] for _ in range(n)]; acc=0
        for x in L:
            i=min(n-1,int((acc+x[1]*0.5)*n/max(tot,1))); out[i].append(x); acc+=x[1]
        return out
    a("s_mov_b32 s36, s34")
    a(f"s_add_u32 s37, s34, {2*SLAB}")
    for x,_ in dma("s36"): a(x)
    for ks in range(18):
        for sl in range(2): a(bload(sl,ks))
    a("s_lshl_b32 s8, s33, 6")
    a(f"v_add_u32 v{VD}, s8, v{VD0}")
    a("s_lshl_b32 s8, s32, 10")
    a(f"v_add_u32 v{VH}, s8, v{VL}")
    a("s_mov_b32 s58, s54"); a("s_mov_b32 s59, s55"); a("s_mov_b32 s60, 0x7ff00000"); a("s_mov_b32 s61, 0x7ff00000")
    a.stamp(1)
    a("s_waitcnt vmcnt(36)")
    a("s_barrier")
    a.stamp(2)
    for x in areads(0,0,0,0): a(x)
    later=dma("s37")+[(bload(sl,ks),1) for ks in range(18) for sl in (2,3)]
    lsp=[later[3*i:3*i+3] for i in range(18)]
    issued=0
    for t in range(2):
        gl=split(gelu(0,(0,1),False),9) if t==1 else [[] for _ in range(9)]
        for n in range(9):
            gi=t*9+n; buf=gi&1
            if t==0: a(f"s_waitcnt vmcnt({36-4*(n+1)+issued}) lgkmcnt(0)")
            elif n==8:
                a(f"s_waitcnt vmcnt({issued-18}) lgkmcnt(0)")
                a("s_barrier")
            else: a("s_waitcnt lgkmcnt(0)")
            if gi<17: nx=areads(0,(gi+1)//9,(gi+1)%9,buf^1)
            else: nx=areads(1,0,0,buf^1)
            interleave(a, mfmas(t,n,buf,(0,1)), nx, gl[n]+lsp[gi])
            issued+=3
    a.stamp(3)
    a("s_waitcnt vmcnt(0)")
    a.stamp(4)
    a("s_mov_b32 s38, 0")
    a.label(f"{name}_loop")
    for half in range(2):
        stage=1-half
        a("s_add_u32 s8, s33, s38")
        a("s_add_u32 s28, s8, 1")
        a("s_lshl_b32 s28, s28, 6")
        a("s_cmp_eq_u32 s38, 3")
        a("s_cselect_b32 s28, 0x7ff00000, s28")
        a(f"v_add_u32 v{VD}, s28, v{VD0}")
        for t in range(2):
            gl=split(gelu(t^1,(0,1,2,3),t==0),9)
            dl=split(dma("s36" if stage==1 else "s37"),9) if t==0 else [[] for _ in range(9)]
            for n in range(9):
                gi=t*9+n; buf=gi&1
                if gi==17:
                    cnt=0
                    for ln in reversed(a.l):
                        if "buffer_" in ln:
                            if ln.rstrip().endswith(" lds"): break
                            cnt+=1
                    a(f"s_waitcnt vmcnt({cnt}) lgkmcnt(0)")
                    a("s_barrier")
                else: a("s_waitcnt lgkmcnt(0)")
                if gi<17: nx=areads(stage,(gi+1)//9,(gi+1)%9,buf^1)
                else: nx=areads(stage^1,0,0,buf^1)
                extra=[]
                if gi==9:
                    extra=[("s_lshl_b32 s8, s8, 10",1),(f"v_add_u32 v{VH}, s8, v{VL}",1),("s_mov_b32 s60, s56",1),("s_mov_b32 s61, s57",1),("s_add_u32 s38, s38, 1",1)]
                bulk=[]
                g=list(gl[n]); d=list(dl[n])
                while g or d:
                    for _ in range(8):
                        if g: bulk.append(g.pop(0))
                    if d: bulk.append(d.pop(0))
                interleave(a, mfmas(t,n,buf,(0,1,2,3)), nx, extra+bulk)
    a("s_cmp_lt_u32 s38, 4")
    a(f"s_cbranch_scc1 {name}_loop")
    a.stamp(5)
    a("s_nop 7")
    for x,_ in gelu(1,(0,1,2,3),True): a(x)
    a("s_waitcnt lgkmcnt(0)")
    a.stamp_flush(6)
    a.label(f"{name}_end")
    a("s_endpgm")
    return kernel_desc(name, 512, 256, 70)

K4_LDS=4*SLAB
def k4(a, name):
    VA=2; VDM=6; VL=15; AF=16; ACC=64
    def breg(sl,kp):
        i=(kp*4+sl)*4
        return f"a[{i}:{i+3}]" if i<256 else f"v[{224+i-256}:{224+i-256+3}]"
    kernel_begin(a, name)
    a("s_cmp_ge_u32 s2, 256")
    a(f"s_cbranch_scc1 {name}_end")
    a.stamp(0)
    a(f"s_load_dwordx2 s[4:5], s[0:1], {KA['wd']}")
    a(f"s_load_dwordx2 s[10:11], s[0:1], {KA['ws']}")
    a("v_lshrrev_b32 v1, 6, v0")
    a("s_and_b32 s3, s2, 7")
    a("s_lshr_b32 s8, s2, 3")
    a("v_readfirstlane_b32 s30, v1")
    a("s_lshr_b32 s9, s3, 2")
    a("s_lshl_b32 s9, s9, 3")
    a("s_lshr_b32 s28, s8, 2")
    a("s_add_u32 s9, s9, s28")
    a("s_and_b32 s3, s3, 3")
    a("s_and_b32 s31, s8, 3")
    a("s_and_b32 s32, s30, 1")
    a("s_lshr_b32 s33, s30, 1")
    a("s_lshl_b32 s9, s9, 3")
    a("s_lshl_b32 s8, s33, 2")
    a("s_add_u32 s9, s9, s8")
    a("s_mul_i32 s8, s3, 36")
    a("s_mul_i32 s28, s32, 18")
    a("s_add_u32 s8, s8, s28")
    a("s_lshl_b32 s8, s8, 10")
    for sl in range(4):
        a(f"s_add_u32 s28, s9, {sl}")
        a(f"s_mul_i32 s28, s28, 147456")
        a(f"s_add_u32 s{50+sl}, s28, s8")
    a(f"s_mul_i32 s36, s3, {1152*1152}")
    a("s_mul_i32 s34, s30, 9216")
    a("v_and_b32 v32, 63, v0")
    a(f"v_lshlrev_b32 v{VL}, 4, v32")
    a("s_mul_i32 s8, s30, 576")
    a("s_mov_b32 s28, 238609295")
    a("s_mul_i32 s29, s31, 288")
    for i in range(9):
        a(f"v_add_u32 v33, {64*i}, v32")
        a("v_add_u32 v33, s8, v33")
        a("v_mul_hi_u32 v34, v33, s28")
        a("v_mul_u32_u24 v35, 18, v34")
        a("v_sub_u32 v33, v33, v35")
        a("v_lshrrev_b32 v35, 6, v34")
        a("v_mul_u32_u24 v35, 512, v35")
        a("v_add_u32 v34, v34, v35")
        a("v_mul_u32_u24 v34, 1152, v34")
        a("v_lshl_add_u32 v34, v33, 4, v34")
        a(f"v_add_u32 v{VDM+i}, s29, v34")
    a("v_lshrrev_b32 v33, 2, v32")
    a("v_mul_u32_u24 v33, 288, v33")
    a("v_and_b32 v34, 3, v32")
    a("v_lshl_add_u32 v33, v34, 3, v33")
    a("s_mul_i32 s8, s32, 18432")
    a(f"v_add_u32 v{VA}, s8, v33")
    for st in range(1,4): a(f"v_add_u32 v{VA+st}, {st*SLAB}, v{VA}")
    for j in range(1,5): a(f"v_add_u32 v{39+j}, {4096*j}, v{VL}")
    a("s_waitcnt lgkmcnt(0)")
    a.srd(12, 4, SZ['wd'])
    srd_ws(a, 20, 10, HH, HHSZ); srd_ws(a, 24, 10, PART, 4*TSZ)
    def dma(stage):
        L=[]
        for i in range(9):
            L.append((f"s_add_u32 m0, s34, {(stage%4)*SLAB+i*1024}\ns_nop 0\nbuffer_load_dwordx4 v{VDM+i}, s[12:15], s36 offen lds",3))
        L.append((f"s_add_u32 s36, s36, {64*1152}",1))
        return L
    def bload(sl,kp):
        v = VL if kp<4 else 39+kp//4
        return (f"buffer_load_dwordx4 {breg(sl,kp)}, v{v}, s[20:23], s{50+sl} offen offset:{(kp%4)*1024}",1)
    def areads(stage,dt,buf):
        L=[]
        for j in range(2):
            d=AF+buf*8+j*4
            for hf in range(2):
                L.append(f"ds_read_b64_tr_b16 v[{d+2*hf}:{d+2*hf+1}], v{VA+stage%4} offset:{(32*j+16*hf)*288+32*dt}")
        return L
    def mfmas(stage,dt,buf):
        L=[]
        for sl in range(4):
            acc=ACC+(sl*9+dt)*4
            for j in range(2):
                d=AF+buf*8+j*4
                c="0" if (stage==0 and j==0) else f"v[{acc}:{acc+3}]"
                L.append(f"v_mfma_f32_16x16x32_bf16 v[{acc}:{acc+3}], v[{d}:{d+3}], {breg(sl,2*stage+j)}, {c}")
        return L
    seq=[]
    def emit(x,tag):
        a(x[0])
        if "buffer_" in x[0]: seq.append(tag)
    def waitfor(tags):
        last=max(i for i,t in enumerate(seq) if t in tags)
        return min(63,len(seq)-1-last)
    for x in dma(0): emit(x,("d",0))
    for kp in range(2):
        for sl in range(4): emit(bload(sl,kp),("b",0))
    for st in (1,2):
        for x in dma(st): emit(x,("d",st))
        for kp in (2*st,2*st+1):
            for sl in range(4): emit(bload(sl,kp),("b",st))
    a.stamp(1)
    a(f"s_waitcnt vmcnt({waitfor([('d',0)])})")
    a("s_barrier")
    a.stamp(2)
    for x in areads(0,0,0): a(x)
    for st in range(9):
        pend=[]
        if st+3<9:
            pend=[(x,("b",st+3)) for kp in (2*st+6,2*st+7) for x in [bload(sl,kp) for sl in range(4)]]
        for dt in range(9):
            gi=st*9+dt; buf=gi&1
            w="s_waitcnt lgkmcnt(0)"
            if dt==0: w=f"s_waitcnt vmcnt({waitfor([('b',st)])}) lgkmcnt(0)"
            if dt==8 and st<8: w=f"s_waitcnt vmcnt({waitfor([('d',st+1)])}) lgkmcnt(0)"
            a(w)
            if dt==8 and st<8: a("s_barrier")
            nx=[]
            if gi<80: nx=areads((gi+1)//9,(gi+1)%9,buf^1)
            bulk=[]
            if dt==0 and st+3<9: pend=[(x,("d",st+3)) for x in dma(st+3)]+pend
            take=pend[:3] if dt<8 else []
            pend=pend[3:] if dt<8 else pend
            for x,tag in take:
                bulk.append(x)
                if "buffer_" in x[0]: seq.append(tag)
            interleave(a, mfmas(st,dt,buf), nx, bulk)
        assert not pend
        if st==2: a.stamp(3)
    a.stamp(4)
    a(f"s_mul_i32 s8, s30, 18432")
    a(f"s_add_u32 s8, s8, {SLAB}")
    a(f"v_add_u32 v33, s8, v{VL}")
    a(f"s_xor_b32 s28, s30, 1")
    a(f"s_mul_i32 s28, s28, 18432")
    a(f"s_add_u32 s28, s28, {SLAB}")
    a(f"v_add_u32 v34, s28, v{VL}")
    a("s_cmp_eq_u32 s32, 0")
    a(f"s_cbranch_scc1 {name}_kh0")
    def tail(send,keep,lbl):
        for i in range(18):
            r=ACC+(send*9+i)*4
            a(f"ds_write_b128 v33, v[{r}:{r+3}] offset:{1024*i}")
        a("s_waitcnt lgkmcnt(0)")
        a("s_barrier")
        for i in range(18):
            r=ACC+(send*9+i)*4
            a(f"ds_read_b128 v[{r}:{r+3}], v34 offset:{1024*i}")
        a("v_and_b32 v35, 15, v32")
        a("v_lshrrev_b32 v36, 4, v32")
        a("v_lshlrev_b32 v36, 7, v36")
        a("v_lshl_add_u32 v35, v35, 3, v36")
        a(f"s_mul_i32 s8, s3, {TSZ}")
        a(f"s_add_u32 s28, s9, {keep}")
        a("s_mul_i32 s28, s28, 18432")
        a("s_add_u32 s8, s8, s28")
        a("s_mul_i32 s28, s31, 4608")
        a("s_add_u32 s8, s8, s28")
        a("s_add_u32 s28, s8, 18432")
        a("v_add_u32 v36, 4096, v35")
        for i in range(18):
            r=ACC+(send*9+i)*4; k=ACC+(keep*9+i)*4
            a(f"s_waitcnt lgkmcnt({min(15,17-i)})")
            for q in range(4): a(f"v_add_f32 v{k+q}, v{k+q}, v{r+q}")
            a(f"v_cvt_pk_bf16_f32 v{k}, v{k}, v{k+1}")
            a(f"v_cvt_pk_bf16_f32 v{k+1}, v{k+2}, v{k+3}")
            dt=i%9
            so="s8" if i<9 else "s28"
            if dt<8: a(f"buffer_store_dwordx2 v[{k}:{k+1}], v35, s[24:27], {so} offen offset:{512*dt}")
            else: a(f"buffer_store_dwordx2 v[{k}:{k+1}], v36, s[24:27], {so} offen")
        a.stamp(5)
        a.stamp_flush(6)
        a("s_endpgm")
    a("s_nop 7")
    tail(0,2,"a")
    a.label(f"{name}_kh0")
    a("s_nop 7")
    tail(2,0,"b")
    a.label(f"{name}_end")
    a("s_endpgm")
    return kernel_desc(name, 512, 256, 70)

def k5(a, name):
    kernel_begin(a, name)
    a("s_cmp_ge_u32 s2, 256")
    a(f"s_cbranch_scc1 {name}_end")
    a.stamp(0)
    a(f"s_load_dwordx2 s[4:5], s[0:1], {KA['out']}")
    a(f"s_load_dwordx2 s[10:11], s[0:1], {KA['ws']}")
    a("v_and_b32 v1, 7, v0")
    a("v_lshrrev_b32 v2, 3, v0")
    a("s_lshl_b32 s3, s2, 3")
    a("v_add_u32 v3, s3, v1")
    a("v_mul_u32_u24 v4, 1152, v3")
    a("v_lshl_add_u32 v4, v2, 4, v4")
    a("s_lshr_b32 s6, s2, 1")
    a("s_mul_i32 s6, s6, 18432")
    a("v_and_b32 v3, 15, v3")
    a("v_lshlrev_b32 v5, 8, v2")
    a("v_lshl_add_u32 v5, v3, 3, v5")
    a("v_lshlrev_b32 v7, 5, v2")
    a("s_waitcnt lgkmcnt(0)")
    a.srd(12, 4, SZ['out'])
    srd_ws(a, 16, 10, PART, 4*TSZ); srd_ws(a, 20, 10, MODP, 27648); srd_ws(a, 28, 10, X1, TSZ)
    for p in range(4):
        a(f"s_add_u32 s8, s6, {p*TSZ}")
        a(f"buffer_load_dwordx2 v[{8+4*p}:{9+4*p}], v5, s[16:19], s8 offen")
        a(f"buffer_load_dwordx2 v[{10+4*p}:{11+4*p}], v5, s[16:19], s8 offen offset:128")
    a("buffer_load_dwordx2 v[24:25], v5, s[28:31], s6 offen")
    a("buffer_load_dwordx2 v[26:27], v5, s[28:31], s6 offen offset:128")
    for p in range(2):
        a(f"s_mov_b32 s8, {5*2304+p*13824}")
        a(f"buffer_load_dwordx4 v[{28+8*p}:{31+8*p}], v7, s[20:23], s8 offen")
        a(f"buffer_load_dwordx4 v[{32+8*p}:{35+8*p}], v7, s[20:23], s8 offen offset:16")
    a("s_mov_b32 s34, 0xffff0000")
    a.stamp(1)
    S=48; T=56
    for p in range(4):
        a(f"s_waitcnt vmcnt({12-2*p})")
        d = S if p==0 else T
        for q in range(4):
            a(f"v_lshlrev_b32 v{d+2*q}, 16, v{8+4*p+q}")
            a(f"v_and_b32 v{d+2*q+1}, s34, v{8+4*p+q}")
        if p:
            for j in range(8): a(f"v_add_f32 v{S+j}, v{S+j}, v{T+j}")
    a("s_waitcnt vmcnt(0)")
    for q in range(4):
        a(f"v_lshlrev_b32 v{T+2*q}, 16, v{24+q}")
        a(f"v_and_b32 v{T+2*q+1}, s34, v{24+q}")
    for j in range(8): a(f"v_add_f32 v{28+j}, v{28+j}, v{36+j}")
    for q in range(4): a(f"v_cvt_pk_bf16_f32 v{36+q}, v{28+2*q}, v{29+2*q}")
    for q in range(4):
        a(f"v_lshlrev_b32 v{28+2*q}, 16, v{36+q}")
        a(f"v_and_b32 v{29+2*q}, s34, v{36+q}")
    for j in range(8): a(f"v_fmac_f32 v{T+j}, v{S+j}, v{28+j}")
    for q in range(4): a(f"v_cvt_pk_bf16_f32 v{8+q}, v{T+2*q}, v{T+2*q+1}")
    a("buffer_store_dwordx4 v[8:11], v4, s[12:15], 0 offen")
    a.stamp(2)
    a.stamp_flush(3)
    a.label(f"{name}_end")
    a("s_endpgm")
    return kernel_desc(name, 64, 64, 40)
```

```python
from asmlib import *
XT=0x000000; YO=0x240000; MODP=0x480000; H2=0x4C0000; X1=0x700000; HH=0x940000; PART=0x1B40000
TSZ=2359296

def srd_ws(a, s, wsreg, off, size):
    a(f"s_add_u32 s{s}, s{wsreg}, {off}")
    a(f"s_addc_u32 s{s+1}, s{wsreg+1}, 0")
    a(f"s_and_b32 s{s+1}, s{s+1}, 0xffff")
    a(f"s_mov_b32 s{s+2}, {size}")
    a(f"s_mov_b32 s{s+3}, 0x00020000")

def k0(a, name):
    kernel_begin(a, name)
    a("s_cmp_ge_u32 s2, 288")
    a(f"s_cbranch_scc1 {name}_end")
    a.stamp(0)
    a(f"s_load_dwordx4 s[4:7], s[0:1], {KA['k']}")
    a(f"s_load_dwordx2 s[8:9], s[0:1], {KA['shift']}")
    a(f"s_load_dwordx2 s[10:11], s[0:1], {KA['ws']}")
    a("v_lshl_add_u32 v1, s2, 8, v0")
    a("s_mov_b32 s3, 14913081")
    a("v_mul_hi_u32 v2, v1, s3")
    a("v_mul_u32_u24 v3, 288, v2")
    a("v_sub_u32 v3, v1, v3")
    a("v_mul_u32_u24 v4, 9216, v2")
    a("v_lshl_add_u32 v5, v3, 2, v4")
    a("v_subrev_u32 v6, 3456, v5")
    a("v_lshlrev_b32 v7, 4, v3")
    a("v_lshl_add_u32 v8, v3, 5, v4")
    a("s_mov_b32 s28, 4608")
    a("s_waitcnt lgkmcnt(0)")
    a.srd(12, 4, SZ['k']); a.srd(16, 6, SZ['v']); a.srd(20, 8, SZ['shift'])
    srd_ws(a, 24, 10, XT, TSZ)
    K=10; V=22; W=32
    a(f"buffer_load_dwordx4 v[{W}:{W+3}], v7, s[20:23], 0 offen")
    for i in range(3): a(f"buffer_load_dword v{K+i}, v6, s[12:15], 0 offen offset:{i*1152}")
    for r in range(8):
        so = "0" if r<4 else "s28"
        a(f"buffer_load_dword v{K+3+r}, v5, s[12:15], {so} offen offset:{(r%4)*1152}")
    for r in range(8):
        so = "0" if r<4 else "s28"
        a(f"buffer_load_dword v{V+r}, v5, s[16:19], {so} offen offset:{(r%4)*1152}")
    KF=36; WF=48; O=52; P=60; T=68
    a("s_mov_b32 s29, 0xffff0000")
    a.stamp(1)
    a("s_waitcnt vmcnt(8)")
    a.stamp(2)
    for ch in range(2):
        for j in range(4):
            src=W+2*ch+(j>>1)
            a(f"v_and_b32 v{WF+j}, s29, v{src}" if j&1 else f"v_lshlrev_b32 v{WF+j}, 16, v{src}")
        for i in range(11):
            a(f"v_and_b32 v{KF+i}, s29, v{K+i}" if ch else f"v_lshlrev_b32 v{KF+i}, 16, v{K+i}")
        for r in range(8): a(f"v_mul_f32 v{O+r}, v{KF+r}, v{WF+3}")
        for j in (2,1,0):
            for r in range(8): a(f"v_fmac_f32 v{O+r}, v{KF+r+3-j}, v{WF+j}")
        if ch==0: a("s_waitcnt vmcnt(0)")
        for r in range(8):
            a(f"v_and_b32 v{T+r}, s29, v{V+r}" if ch else f"v_lshlrev_b32 v{T+r}, 16, v{V+r}")
        for r in range(8): a(f"v_mul_f32 v{O+r}, v{O+r}, v{T+r}")
        for q in range(4): a(f"v_cvt_pk_bf16_f32 v{P+4*ch+q}, v{O+7-2*q}, v{O+6-2*q}")
        a(f"buffer_store_dwordx4 v[{P+4*ch}:{P+4*ch+3}], v8, s[24:27], 0 offen offset:{16*ch}")
    a.stamp(3)
    a.stamp_flush(4)
    a.label(f"{name}_end")
    a("s_endpgm")
    return kernel_desc(name, 80, 80, 40)

CS=4160; HB=0; XS=4640; XB=16*CS; K1_LDS=XB+4*XS
def k1(a, name):
    kernel_begin(a, name)
    a("s_cmp_ge_u32 s2, 252")
    a(f"s_cbranch_scc1 {name}_end")
    a.stamp(0)
    a(f"s_load_dwordx2 s[10:11], s[0:1], {KA['ws']}")
    a("s_cmp_ge_u32 s2, 144")
    a(f"s_cbranch_scc1 {name}_mod")
    a(f"s_load_dwordx4 s[4:7], s[0:1], {KA['ssmk']}")
    a("v_lshrrev_b32 v1, 6, v0")
    a("s_and_b32 s3, s2, 7")
    a("s_mul_i32 s3, s3, 18")
    a("s_lshr_b32 s8, s2, 3")
    a("v_readfirstlane_b32 s30, v1")
    a("s_add_u32 s3, s3, s8")
    a("v_and_b32 v2, 63, v0")
    a("s_lshl_b32 s8, s3, 2")
    a("s_add_u32 s31, s8, s30")
    a("v_lshrrev_b32 v3, 2, v0")
    a("v_and_b32 v4, 3, v0")
    a("v_mul_u32_u24 v5, 9216, v3")
    a("v_add_u32 v6, s8, v4")
    a("v_lshl_add_u32 v5, v6, 4, v5")
    a(f"v_mul_u32_u24 v6, {XS}, v4")
    a("v_lshl_add_u32 v6, v3, 4, v6")
    a(f"v_add_u32 v6, {XB+512}, v6")
    a("v_lshlrev_b32 v7, 4, v2")
    a("v_subrev_u32 v8, 32, v7")
    a("v_subrev_u32 v9, 16, v7")
    a("s_waitcnt lgkmcnt(0)")
    srd_ws(a, 12, 10, XT, TSZ)
    a("s_lshl_b32 s9, s31, 12")
    a("s_add_u32 s16, s4, s9")
    a("s_addc_u32 s17, s5, 0")
    a("s_and_b32 s17, s17, 0xffff")
    a("s_mov_b32 s18, 4096")
    a("s_mov_b32 s19, 0x00020000")
    a.srd(20, 6, SZ['ssmD'])
    srd_ws(a, 24, 10, YO, TSZ)
    XL=16; HL=32
    for i in range(4):
        a(f"s_mov_b32 s9, {i*64*9216}")
        a(f"buffer_load_dwordx4 v[{XL+4*i}:{XL+4*i+3}], v5, s[12:15], s9 offen")
    for i in range(4):
        a(f"buffer_load_dwordx4 v[{HL+8*i}:{HL+8*i+3}], v7, s[16:19], 0 offen offset:{1024*i}")
        a(f"buffer_load_dwordx2 v[{HL+8*i+4}:{HL+8*i+5}], v7, s[16:19], 0 offen offset:{1024*i+16}")
    a(f"buffer_load_dwordx2 v[{HL+36}:{HL+37}], v9, s[16:19], 0 offen")
    a("s_lshl_b32 s9, s31, 1")
    a("v_mov_b32 v10, s9")
    a("buffer_load_ushort v11, v10, s[20:23], 0 offen")
    for i in range(4): a(f"v_mov_b32 v{HL+32+i}, 0")
    a(f"s_mul_i32 s9, s30, {XS}")
    a(f"s_add_u32 s9, s9, {XB}")
    a("v_add_u32 v12, s9, v7")
    a("s_mov_b64 s[34:35], exec")
    a("s_mov_b32 exec_hi, 0")
    a(f"ds_write_b128 v12, v[{HL+32}:{HL+35}]")
    a("s_mov_b64 exec, s[34:35]")
    a(f"s_mul_i32 s9, s30, {4*CS}")
    a("v_add_u32 v13, s9, v7")
    a("v_and_b32 v14, 15, v2")
    a("v_lshrrev_b32 v15, 4, v2")
    a.stamp(1)
    a("s_waitcnt vmcnt(10)")
    a.stamp(2)
    for i in range(4):
        a(f"ds_write_b128 v6, v[{XL+4*i}:{XL+4*i+3}] offset:{1024*i}")
    T=72
    def copies(base, off, tset):
        t=T+tset*12
        a(f"ds_write_b128 v13, v[{base}:{base+3}] offset:{off}")
        for q in range(4): a(f"v_alignbit_b32 v{t+q}, v{base+q+1}, v{base+q}, 16")
        a(f"ds_write_b128 v13, v[{t}:{t+3}] offset:{off+CS}")
        for q in range(4): a(f"v_mov_b32 v{t+4+q}, v{base+q+1}")
        a(f"ds_write_b128 v13, v[{t+4}:{t+7}] offset:{off+2*CS}")
        for q in range(4): a(f"v_alignbit_b32 v{t+8+q}, v{base+q+2}, v{base+q+1}, 16")
        a(f"ds_write_b128 v13, v[{t+8}:{t+11}] offset:{off+3*CS}")
    for i in range(4):
        a(f"s_waitcnt vmcnt({8-2*i})")
        copies(HL+8*i, 32+1024*i, i&1)
    a("s_waitcnt vmcnt(0)")
    a("s_mov_b64 exec, 3")
    copies(HL+32, 0, 0)
    a("s_mov_b64 exec, s[34:35]")
    a("v_lshlrev_b32 v3, 1, v14")
    a("v_sub_u32 v3, v3, v15")
    a("v_add_u32 v3, 5, v3")
    a(f"s_mul_i32 s9, s30, {XS}")
    a(f"s_add_u32 s9, s9, {XB}")
    a("v_lshl_add_u32 v3, v3, 4, s9")
    a("v_add_u32 v4, 1, v14")
    a("v_and_b32 v5, 3, v4")
    a("v_sub_u32 v4, v4, v5")
    a("v_lshl_add_u32 v4, v15, 3, v4")
    a("v_lshlrev_b32 v4, 1, v4")
    a(f"v_mul_u32_u24 v5, {CS}, v5")
    a(f"s_mul_i32 s9, s30, {4*CS}")
    a("v_add3_u32 v4, v4, v5, s9")
    DF=96
    a("v_lshl_add_u32 v5, v15, 3, v14")
    a("v_sub_u32 v5, 15, v5")
    a("v_and_b32 v7, 1, v5")
    a("v_lshlrev_b32 v7, 4, v7")
    a("v_lshlrev_b32 v7, v7, v11")
    a("v_ashrrev_i32 v5, 1, v5")
    for q in range(4):
        a(f"v_cmp_eq_u32 vcc, {q}, v5")
        a(f"v_cndmask_b32 v{DF+q}, 0, v7, vcc")
    a("v_lshlrev_b32 v12, 9, v15")
    a("v_lshl_add_u32 v12, v14, 3, v12")
    a("s_lshl_b32 s9, s30, 1")
    a("v_add_u32 v12, s9, v12")
    a("s_waitcnt lgkmcnt(0)")
    a("s_barrier")
    a.stamp(3)
    ACC=100; FB=[132, 196-0]
    def xreg(buf,w):
        return f"v[{132+4*w}:{132+4*w+3}]" if buf==0 else f"a[{4*w}:{4*w+3}]"
    def hreg(buf,u,half=None):
        b = 164+4*u if buf==0 else 32+4*u
        p = "v" if buf==0 else "a"
        if half is None: return f"{p}[{b}:{b+3}]"
        return f"{p}[{b+2*half}:{b+2*half+1}]"
    def reads(p):
        buf=p&1; L=[]
        for z in range(8):
            L.append(f"ds_read_b128 {xreg(buf,z)}, v3 offset:{512*z+64*(7-p)}")
            L.append(f"ds_read_b64 {hreg(buf,z,0)}, v4 offset:{512*z+64*p}")
            L.append(f"ds_read_b64 {hreg(buf,z,1)}, v4 offset:{512*z+64*p+8}")
        return L
    for x in reads(0): a(x)
    for p in range(8):
        buf=p&1
        nxt = reads(p+1) if p<7 else []
        a("s_waitcnt lgkmcnt(0)")
        seq=[]
        if p==0:
            for c in range(8): seq.append((c, xreg(0,c), f"v[{DF}:{DF+3}]", True))
        for c in range(7,-1,-1):
            for u in range(c+1): seq.append((c, xreg(buf,c-u), hreg(buf,u), False))
        for n,(c,A_,B_,first) in enumerate(seq):
            acc=f"v[{ACC+4*c}:{ACC+4*c+3}]"
            a(f"v_mfma_f32_16x16x32_bf16 {acc}, {A_}, {B_}, {'0' if first else acc}")
            if nxt: a(nxt.pop(0))
        assert not nxt
    a.stamp(4)
    a("s_barrier")
    for c in range(7,-1,-1):
        a(f"v_cvt_pk_bf16_f32 v{16+2*c}, v{ACC+4*c}, v{ACC+4*c+1}")
        a(f"v_cvt_pk_bf16_f32 v{17+2*c}, v{ACC+4*c+2}, v{ACC+4*c+3}")
        a(f"ds_write_b16 v12, v{16+2*c} offset:{2048*c}")
        a(f"ds_write_b16_d16_hi v12, v{16+2*c} offset:{2048*c+128}")
        a(f"ds_write_b16 v12, v{17+2*c} offset:{2048*c+256}")
        a(f"ds_write_b16_d16_hi v12, v{17+2*c} offset:{2048*c+384}")
    a("v_lshlrev_b32 v5, 4, v0")
    a("v_lshrrev_b32 v6, 3, v0")
    a("v_mul_u32_u24 v6, 18432, v6")
    a("v_and_b32 v7, 7, v0")
    a("v_lshl_add_u32 v6, v7, 4, v6")
    a("s_lshl_b32 s9, s3, 7")
    a("v_add_u32 v6, s9, v6")
    a("s_waitcnt lgkmcnt(0)")
    a("s_barrier")
    for i in range(4): a(f"ds_read_b128 v[{32+4*i}:{35+4*i}], v5 offset:{4096*i}")
    for i in range(4):
        a(f"s_mov_b32 s9, {i*32*18432}")
        a(f"s_waitcnt lgkmcnt({3-i})")
        a(f"buffer_store_dwordx4 v[{32+4*i}:{35+4*i}], v6, s[24:27], s9 offen")
    a.stamp(5)
    a.stamp_flush(6)
    a("s_endpgm")
    a.label(f"{name}_mod")
    a(f"s_load_dwordx4 s[4:7], s[0:1], {KA['c']}")
    a("s_sub_u32 s3, s2, 144")
    a("s_cmp_ge_u32 s3, 54")
    a("s_cselect_b32 s8, 1, 0")
    a("s_mul_i32 s9, s8, 54")
    a("s_sub_u32 s3, s3, s9")
    a("s_mov_b32 s36, s3")
    a("v_lshrrev_b32 v1, 3, v0")
    a("v_and_b32 v2, 7, v0")
    a("s_mul_i32 s9, s8, 288")
    a("v_add_u32 v3, s9, v1")
    a("v_lshlrev_b32 v4, 1, v3")
    a("v_mul_u32_u24 v5, 6912, v3")
    a("v_lshl_add_u32 v5, v2, 4, v5")
    a("s_lshl_b32 s9, s3, 7")
    a("v_add_u32 v5, s9, v5")
    a("s_waitcnt lgkmcnt(0)")
    a.srd(12, 4, SZ['c']); a.srd(16, 6, SZ['wmod'])
    srd_ws(a, 24, 10, MODP, 27648)
    for i in range(9): a(f"buffer_load_ushort v{8+i}, v4, s[12:15], 0 offen offset:{64*i}")
    for i in range(9):
        a(f"s_mov_b32 s9, {i*32*6912}")
        a(f"buffer_load_dwordx4 v[{20+4*i}:{23+4*i}], v5, s[16:19], s9 offen")
    a("s_mov_b32 s29, 0xffff0000")
    a("s_mov_b32 s28, 0xbfb8aa3b")
    a.stamp(1)
    a("s_waitcnt vmcnt(9)")
    a.stamp(2)
    for i in range(9): a(f"v_lshlrev_b32 v{8+i}, 16, v{8+i}")
    for i in range(9): a(f"v_mul_f32 v{60+i}, s28, v{8+i}")
    for i in range(9): a(f"v_exp_f32 v{60+i}, v{60+i}")
    for i in range(9): a(f"v_add_f32 v{60+i}, 1.0, v{60+i}")
    for i in range(9): a(f"v_rcp_f32 v{60+i}, v{60+i}")
    for i in range(9): a(f"v_mul_f32 v{8+i}, v{8+i}, v{60+i}")
    for i in range(9): a(f"v_cvt_pk_bf16_f32 v{8+i}, v{8+i}, v{8+i}")
    for i in range(9): a(f"v_lshlrev_b32 v{8+i}, 16, v{8+i}")
    AC=72
    for i in range(9):
        a(f"s_waitcnt vmcnt({8-i})")
        for q in range(4):
            a(f"v_lshlrev_b32 v{60+2*q}, 16, v{20+4*i+q}")
            a(f"v_and_b32 v{61+2*q}, s29, v{20+4*i+q}")
        for j in range(8):
            a(f"v_mul_f32 v{AC+j}, v{60+j}, v{8+i}" if i==0 else f"v_fmac_f32 v{AC+j}, v{60+j}, v{8+i}")
    a("v_lshlrev_b32 v6, 5, v0")
    a(f"ds_write_b128 v6, v[{AC}:{AC+3}]")
    a(f"ds_write_b128 v6, v[{AC+4}:{AC+7}] offset:16")
    a("s_waitcnt lgkmcnt(0)")
    a("s_barrier")
    a.stamp(3); a.stamp(4); a.stamp(5); a.stamp_flush(6, 100)
    a("v_cmp_gt_u32 vcc, 64, v0")
    a("s_and_saveexec_b64 s[34:35], vcc")
    a(f"s_cbranch_execz {name}_end")
    a("v_lshlrev_b32 v6, 2, v0")
    for i in range(32): a(f"ds_read_b32 v{8+i}, v6 offset:{256*i}")
    a("s_waitcnt lgkmcnt(0)")
    for st in (16,8,4,2,1):
        for i in range(st): a(f"v_add_f32 v{8+i}, v{8+i}, v{8+i+st}")
    a("s_mul_i32 s9, s8, 13824")
    a("s_lshl_b32 s3, s36, 8")
    a("s_add_u32 s9, s9, s3")
    a("buffer_store_dword v8, v6, s[24:27], s9 offen")
    a.label(f"{name}_end")
    a("s_endpgm")
    return kernel_desc(name, 256+64, 256, 40)

K2_LDS=5*2304+2*9*64
def k2(a, name):
    kernel_begin(a, name)
    a("s_cmp_ge_u32 s2, 256")
    a(f"s_cbranch_scc1 {name}_end")
    a.stamp(0)
    a(f"s_load_dwordx2 s[4:5], s[0:1], {KA['q']}")
    a(f"s_load_dwordx2 s[10:11], s[0:1], {KA['ws']}")
    a("v_and_b32 v1, 7, v0")
    a("v_lshrrev_b32 v2, 3, v0")
    a("s_lshl_b32 s3, s2, 3")
    a("v_add_u32 v3, s3, v1")
    a("v_mul_u32_u24 v4, 1152, v3")
    a("v_lshl_add_u32 v4, v2, 4, v4")
    a("s_lshr_b32 s6, s2, 1")
    a("s_mul_i32 s6, s6, 18432")
    a("v_and_b32 v3, 15, v3")
    a("v_lshlrev_b32 v5, 8, v2")
    a("v_lshl_add_u32 v6, v3, 4, v5")
    a("v_lshl_add_u32 v5, v3, 3, v5")
    a("v_lshlrev_b32 v7, 2, v0")
    a("v_lshrrev_b32 v8, 6, v0")
    a("s_waitcnt lgkmcnt(0)")
    a.srd(12, 4, SZ['q'])
    srd_ws(a, 16, 10, YO, TSZ); srd_ws(a, 20, 10, MODP, 27648); srd_ws(a, 24, 10, H2, TSZ); srd_ws(a, 28, 10, X1, TSZ)
    a("v_readfirstlane_b32 s33, v8")
    a("buffer_load_dwordx4 v[12:15], v4, s[12:15], 0 offen")
    a("s_mov_b32 s7, 13824")
    for v in range(5):
        a(f"s_mov_b32 s8, {v*2304}")
        a(f"buffer_load_dword v{20+v}, v7, s[20:23], s8 offen")
        a(f"s_mov_b32 s8, {v*2304+13824}")
        a(f"buffer_load_dword v{25+v}, v7, s[20:23], s8 offen")
    a("buffer_load_dwordx2 v[16:17], v5, s[16:19], s6 offen")
    a("buffer_load_dwordx2 v[18:19], v5, s[16:19], s6 offen offset:128")
    a("s_mov_b32 s29+0, 0".replace("+0","") if False else "s_mov_b32 s34, 0xffff0000")
    Q=32; Yv=40; S=48
    def unpack(dst, src, n=4):
        for q in range(n):
            a(f"v_lshlrev_b32 v{dst+2*q}, 16, v{src+q}")
            a(f"v_and_b32 v{dst+2*q+1}, s34, v{src+q}")
    def stats(src, slot):
        a(f"v_add_f32 v{S}, v{src}, v{src+1}")
        a(f"v_mul_f32 v{S+1}, v{src}, v{src}")
        for j in range(1,8):
            if j>1: a(f"v_add_f32 v{S}, v{S}, v{src+j}")
            a(f"v_fmac_f32 v{S+1}, v{src+j}, v{src+j}")
        for z in range(2): a(f"v_add_f32 v{S+z}, v{S+z}, v{S+z} row_ror:8")
        for pl in ("v_permlane16_swap_b32","v_permlane32_swap_b32"):
            for z in range(2): a(f"v_mov_b32 v{S+2+z}, v{S+z}")
            for z in range(2): a(f"{pl} v{S+z}, v{S+2+z}")
            for z in range(2): a(f"v_add_f32 v{S+z}, v{S+z}, v{S+2+z}")
        base=5*2304+slot*9*64
        a(f"s_lshl_b32 s8, s33, 6")
        a(f"v_lshl_add_u32 v9, v1, 3, s8")
        a(f"ds_write_b64 v9, v[{S}:{S+1}] offset:{base}")
    def stats_finish(slot):
        base=5*2304+slot*9*64
        a("v_lshlrev_b32 v9, 3, v1")
        for w in range(9): a(f"ds_read_b64 v[{S+4+2*w}:{S+5+2*w}], v9 offset:{base+64*w}")
        a("s_waitcnt lgkmcnt(0)")
        for z in range(2):
            for w in range(1,9): a(f"v_add_f32 v{S+4+z}, v{S+4+z}, v{S+4+2*w+z}")
        a("s_mov_b32 s8, 0x3ae38e39")
        a(f"v_mul_f32 v{S}, s8, v{S+4}")
        a(f"v_mul_f32 v{S+1}, s8, v{S+5}")
        a(f"v_fma_f32 v{S+1}, -v{S}, v{S}, v{S+1}")
        a(f"v_max_f32 v{S+1}, 0, v{S+1}")
        a(f"v_add_f32 v{S+1}, 0x3727c5ac, v{S+1}")
        a(f"v_rsq_f32 v{S+1}, v{S+1}")
    a.stamp(1)
    a("s_waitcnt vmcnt(12)")
    a.stamp(2)
    unpack(Q, 12)
    stats(Q, 0)
    a("s_waitcnt vmcnt(2)")
    for v in range(5):
        a(f"v_add_f32 v{20+v}, v{20+v}, v{25+v}")
        a(f"v_cvt_pk_bf16_f32 v{20+v}, v{20+v}, v{20+v}")
        a(f"v_lshlrev_b32 v{20+v}, 16, v{20+v}")
        if v in (1,4):
            a(f"v_add_f32 v{20+v}, 1.0, v{20+v}")
            a(f"v_cvt_pk_bf16_f32 v{20+v}, v{20+v}, v{20+v}")
            a(f"v_lshlrev_b32 v{20+v}, 16, v{20+v}")
        a(f"ds_write_b32 v7, v{20+v} offset:{v*2304}")
    a("s_waitcnt lgkmcnt(0)")
    a("s_barrier")
    a.stamp(3)
    M=72
    a("v_lshlrev_b32 v10, 5, v2")
    for v in range(5):
        a(f"ds_read_b128 v[{M+8*v}:{M+8*v+3}], v10 offset:{v*2304}")
        a(f"ds_read_b128 v[{M+8*v+4}:{M+8*v+7}], v10 offset:{v*2304+16}")
    stats_finish(0)
    a("s_waitcnt vmcnt(0)")
    unpack(Yv, 16)
    H=20
    for j in range(8): a(f"v_sub_f32 v{H+j}, v{Q+j}, v{S}")
    for j in range(8): a(f"v_mul_f32 v{H+j}, v{H+j}, v{S+1}")
    for j in range(8): a(f"v_fma_f32 v{H+j}, v{H+j}, v{M+8+j}, v{M+j}")
    for j in range(8): a(f"v_mul_f32 v{H+j}, v{H+j}, v{Yv+j}")
    for j in range(8): a(f"v_fma_f32 v{H+j}, v{H+j}, v{M+16+j}, v{Q+j}")
    for q in range(4): a(f"v_cvt_pk_bf16_f32 v{12+q}, v{H+2*q}, v{H+2*q+1}")
    a("buffer_store_dwordx2 v[12:13], v5, s[28:31], s6 offen")
    a("buffer_store_dwordx2 v[14:15], v5, s[28:31], s6 offen offset:128")
    unpack(Q, 12)
    stats(Q, 1)
    a("s_waitcnt lgkmcnt(0)")
    a("s_barrier")
    a.stamp(4)
    stats_finish(1)
    for j in range(8): a(f"v_sub_f32 v{H+j}, v{Q+j}, v{S}")
    for j in range(8): a(f"v_mul_f32 v{H+j}, v{H+j}, v{S+1}")
    for j in range(8): a(f"v_fma_f32 v{H+j}, v{H+j}, v{M+32+j}, v{M+24+j}")
    for q in range(4): a(f"v_cvt_pk_bf16_f32 v{16+q}, v{H+2*q}, v{H+2*q+1}")
    a("buffer_store_dwordx4 v[16:19], v6, s[24:27], s6 offen")
    a.stamp(5)
    a.stamp_flush(6)
    a.label(f"{name}_end")
    a("s_endpgm")
    return kernel_desc(name, 112, 112, 40)
```

```python
from asmlib import *
from layout import *
from sched import Op, schedule
import struct
def fbits(x): return "0x%08x"%struct.unpack("<I",struct.pack("<f",x))[0]
C0=-2*1.4426950408889634*0.7978845608028654
C1=C0*0.044715
KF_LDS=163840
LMOD=4*SLAB
LST=LMOD+13824
SPIN=400000
OPT=dict(wdpf=1)
sWG,sWU,sWD,sWS,sQO=4,8,12,16,20
sW,sE,sJ,sPAR,sKPS,sKPF,sKQ,sKH,sRH,sDS=24,25,26,27,28,29,30,31,32,33
sLW,sC0,sDB,sDEL,sIT,sWO=34,35,36,37,38,39
sDM=40
sT0,sT1,sT2=3,49,66
sH2=50; sHS=54; sHC=58; sHL=62
sSB=67; sRT2=68; sSP=69
VA=2; VD0=6; VD=7; VH=8; VL=9; VC1=10; VP=11; VPA=12; VF=13; VA2=14
VOF=24
TEMPS=[16,17,18,19,20,21,22,23,28,29,30]; VPF=31
AF=32
VDM=[56,57,58,59,60,61,62,63,1]
ACC=64; HP=128
def breg(i):
    i*=4
    return f"a[{i}:{i+3}]" if i<256 else f"v[{224+i-256}:{224+i-256+3}]"
def breg2(i):
    i*=4
    return f"a[{i}:{i+3}]" if i<256 else f"v[{96+i-256}:{96+i-256+3}]"
ACC2=list(range(64,96,4))+list(range(144,256,4))
PORD=[4,0,5,1,6,2,7,3,8]

def poll_slow(a, lbl, need, addr_s, back):
    a.label(lbl)
    a(f"s_mov_b32 s{sSP}, 0")
    a.label(lbl+"_l")
    a(f"buffer_load_dword v{VP}, v{VPA}, s[{sWS}:{sWS+3}], {addr_s} offen sc1")
    a(f"s_add_u32 s{sSP}, s{sSP}, 1")
    a("s_waitcnt vmcnt(0)")
    a(f"v_cmp_gt_u32 vcc, {need}, v{VP}")
    a(f"s_cmp_ge_u32 s{sSP}, {SPIN}")
    a(f"s_cbranch_scc1 {back}")
    a("s_nop 2")
    a(f"s_cbranch_vccnz {lbl}_l")
    a(f"s_branch {back}")

def kf(a, name):
    SP=OPT.get('sp',['start','cv0','t0','y','lnd','f3','loop'])
    def stamp(n):
        if n in SP: a.stamp(SP.index(n))
    kernel_begin(a, name)
    a("s_cmp_ge_u32 s2, 256")
    a(f"s_cbranch_scc1 {name}_end")
    WS=f"s[{sWS}:{sWS+3}]"
    def flagstore(F,val_s):
        return [f"s_add_u32 s{sT1}, s{sSB}, {F}", f"v_mov_b32 v{VF}, {val_s}", "s_mov_b64 exec, 1",
                f"buffer_store_dword v{VF}, v{VF+0}, {WS}, s{sT1} sc1".replace(f"v{VF}, v{VF}, ",f"v{VF}, off, "), "s_mov_b64 exec, -1"]
    def SETUP(a):
        a(f"s_lshl_b32 s{sT0}, s2, 2"); a(f"s_add_u32 s{sT0}, s{sT0}, s{sW}")
        a(f"s_mul_i32 s{sSB}, s{sT0}, {FSTR}")
        a("v_min_u32 v244, 23, v205")
        a("v_mul_u32_u24 v245, 43691, v244"); a("v_lshrrev_b32 v245, 17, v245")
        a("v_mul_u32_u24 v246, 3, v245"); a("v_sub_u32 v244, v244, v246")
        a(f"s_lshl_b32 s{sT0}, s{sW}, 3")
        a(f"v_add_u32 v245, s{sT0}, v245")
        a("v_and_b32 v246, 3, v245"); a("v_lshrrev_b32 v245, 2, v245")
        a(f"s_and_b32 s{sT0}, s{sJ}, 28")
        a(f"v_add_u32 v246, s{sT0}, v246")
        a("v_lshl_add_u32 v245, v246, 3, v245")
        a("v_lshl_add_u32 v245, v245, 2, v244")
        a(f"v_mul_u32_u24 v{VPA}, {FSTR}, v245")
        a(f"s_lshr_b32 s{sT0}, s{sJ}, 2"); a(f"s_lshl_b32 s{sT0}, s{sT0}, 4")
        a(f"s_lshl_b32 s{sT1}, s{sW}, 2"); a(f"s_add_u32 s{sT0}, s{sT0}, s{sT1}")
        a(f"s_lshl_b32 s{sT1}, s{sPAR}, 1")
        for sl in range(4):
            a(f"s_xor_b32 s{sT2}, s{sT1}, {sl}"); a(f"s_add_u32 s{sT2}, s{sT2}, s{sT0}")
            a(f"s_mul_i32 s{sH2+sl}, s{sT2}, 18432"); a(f"s_add_u32 s{sH2+sl}, s{sH2+sl}, {H2}")
            a(f"s_mul_i32 s{sHS+sl}, s{sT2}, 147456"); a(f"s_add_u32 s{sHS+sl}, s{sHS+sl}, {HH}")
        a(f"s_mov_b32 s{sHC}, s{sHS}"); a(f"s_mov_b32 s{sHC+1}, s{sHS+1}"); a(f"s_mov_b32 s{sHC+2}, 0x7ff00000"); a(f"s_mov_b32 s{sHC+3}, 0x7ff00000")
        a("v_lshrrev_b32 v244, 4, v205")
        a("v_bfe_u32 v245, v205, 2, 2")
        a("v_lshl_add_u32 v245, v244, 3, v245")
        a("v_lshlrev_b32 v245, 6, v245")
        a("v_and_b32 v246, 3, v205")
        a("v_lshl_add_u32 v245, v246, 3, v245")
        a("v_and_b32 v244, 1, v244")
        a(f"v_lshl_add_u32 v{VA}, v244, 5, v245")
        a(f"v_xor_b32 v{VA+1}, 32, v{VA}")
        for t in range(2): a(f"v_add_u32 v{VA+2+t}, {SLAB}, v{VA+t}")
        a(f"v_mov_b32 v{VC1}, {fbits(C1)}")
        a(f"s_mov_b32 s{sC0}, {fbits(C0)}")
        for j in range(1,5): a(f"v_add_u32 v{VOF-1+j}, {4096*j}, v{VL}")
        a(f"s_lshl_b32 s{sT0}, s{sKPS}, 10")
        a(f"v_add_u32 v{VH}, s{sT0}, v{VL}")
        a(f"s_lshl_b32 s{sT0}, s{sKPF}, 6")
        a(f"v_add_u32 v{VD}, s{sT0}, v{VD0}")
        a(f"s_and_b32 s{sKH}, s{sW}, 1"); a(f"s_lshr_b32 s{sRH}, s{sW}, 1")
        a(f"s_and_b32 s{sT0}, s{sE}, 1"); a(f"s_lshl_b32 s{sT0}, s{sT0}, 3")
        a(f"s_lshr_b32 s{sT1}, s{sJ}, 2"); a(f"s_add_u32 s{sRT2}, s{sT0}, s{sT1}")
        a(f"s_lshl_b32 s{sT0}, s{sRT2}, 3"); a(f"s_lshl_b32 s{sT1}, s{sRH}, 2"); a(f"s_add_u32 s{sT0}, s{sT0}, s{sT1}")
        a(f"s_lshl_b32 s{sT1}, s{sKQ}, 1"); a(f"s_add_u32 s{sT1}, s{sT1}, s{sKH}")
        a(f"s_mul_i32 s{sT1}, s{sT1}, {18*1024}"); a(f"s_add_u32 s{sT1}, s{sT1}, {HH}")
        for sl in range(4):
            a(f"s_xor_b32 s{sT2}, s{sKQ}, {sl}"); a(f"s_add_u32 s{sT2}, s{sT2}, s{sT0}")
            a(f"s_mul_i32 s{sT2}, s{sT2}, 147456"); a(f"s_add_u32 s{sHL+sl}, s{sT2}, s{sT1}")
        a(f"s_mul_i32 s{sT0}, s{sW}, 576")
        a(f"s_mov_b32 s{sT1}, 238609295")
        a(f"s_mul_i32 s{sT2}, s{sDS}, 288")
        for i in range(9):
            a(f"v_add_u32 v244, {64*i}, v205")
            a(f"v_add_u32 v244, s{sT0}, v244")
            a(f"v_mul_hi_u32 v245, v244, s{sT1}")
            a("v_mul_u32_u24 v246, 18, v245")
            a("v_sub_u32 v244, v244, v246")
            a("v_lshrrev_b32 v246, 5, v245")
            a("v_mul_u32_u24 v246, 256, v246")
            a("v_add_u32 v245, v245, v246")
            a("v_mul_u32_u24 v245, 1152, v245")
            a("v_lshl_add_u32 v245, v244, 4, v245")
            a(f"v_add_u32 v{VDM[i]}, s{sT2}, v245")
        a(f"s_lshl_b32 s{sT0}, s{sJ}, 2"); a(f"s_add_u32 s{sT0}, s{sT0}, s{sW}"); a(f"s_mul_i32 s{sT0}, s{sT0}, {27*128}")
        a(f"s_add_u32 s{sT0}, s{sT0}, s{sWO}")
        a("v_min_u32 v244, 26, v205")
        a(f"v_lshl_add_u32 v{VPF}, v244, 7, s{sT0}")
        a("v_lshrrev_b32 v244, 2, v205")
        a("v_mul_u32_u24 v244, 288, v244")
        a("v_and_b32 v245, 3, v205")
        a("v_lshl_add_u32 v244, v245, 3, v244")
        a(f"s_mul_i32 s{sT0}, s{sKH}, 18432")
        a(f"v_add_u32 v{VA2}, s{sT0}, v244")
        a(f"v_add_u32 v{VA2+1}, {2*SLAB}, v{VA2}")

    stamp('start')
    a(f"s_load_dwordx2 s[{sQO}:{sQO+1}], s[0:1], {KA['q']}")
    a(f"s_load_dwordx2 s[{sWS}:{sWS+1}], s[0:1], {KA['ws']}")
    a(f"s_load_dwordx2 s[{sWG}:{sWG+1}], s[0:1], {KA['wg']}")
    a(f"s_load_dwordx2 s[{sWU}:{sWU+1}], s[0:1], {KA['wu']}")
    a(f"s_load_dwordx2 s[{sWD}:{sWD+1}], s[0:1], {KA['wd']}")
    a("s_cmp_ge_u32 s2, 144")
    a(f"s_cselect_b32 s{sT0}, {KA['c']}, {KA['ssmk']}")
    a(f"s_load_dwordx4 s[60:63], s[0:1], s{sT0}")
    a("v_lshrrev_b32 v1, 6, v0")
    a(f"s_and_b32 s{sE}, s2, 7")
    a(f"s_lshr_b32 s{sJ}, s2, 3")
    a(f"v_readfirstlane_b32 s{sW}, v1")
    a(f"s_and_b32 s{sDS}, s{sJ}, 3")
    a(f"s_lshr_b32 s{sT1}, s{sJ}, 2")
    a(f"s_lshl_b32 s{sT0}, s{sE}, 2"); a(f"s_add_u32 s{sT0}, s{sT0}, s{sDS}")
    a(f"s_lshl_b32 s{sT2}, s{sT1}, 5"); a(f"s_add_u32 s{sT0}, s{sT0}, s{sT2}")
    vN,vCL,vQO,vYO,vHO,vLN=200,201,202,203,204,205
    a(f"v_and_b32 v{vLN}, 63, v0")
    a(f"v_lshlrev_b32 v{VL}, 4, v{vLN}")
    a(f"v_and_b32 v{vN}, 7, v0")
    a(f"v_lshrrev_b32 v{vCL}, 3, v0")
    a(f"s_lshl_b32 s{sT2}, s{sT0}, 3")
    a(f"v_add_u32 v244, s{sT2}, v{vN}")
    a(f"v_mul_u32_u24 v{vQO}, 1152, v244")
    a(f"v_lshl_add_u32 v{vQO}, v{vCL}, 4, v{vQO}")
    a(f"s_lshr_b32 s{sT0}, s{sT0}, 1")
    a(f"s_mul_i32 s{sSB}, s{sT0}, 18432")
    a("v_and_b32 v244, 15, v244")
    a(f"v_lshlrev_b32 v245, 8, v{vCL}")
    a(f"v_lshl_add_u32 v{vHO}, v244, 4, v245")
    a(f"v_lshl_add_u32 v{vYO}, v244, 3, v245")
    a(f"s_and_b32 s{sPAR}, s{sDS}, 1")
    a(f"s_lshr_b32 s{sT0}, s{sDS}, 1")
    a(f"s_mul_i32 s{sT0}, s{sT0}, 9")
    a(f"s_mul_i32 s{sT2}, s{sE}, 18")
    a(f"s_add_u32 s{sT0}, s{sT0}, s{sT2}")
    a(f"s_add_u32 s{sKPS}, s{sT0}, 4")
    a(f"s_mul_i32 s{sT2}, s{sPAR}, 5")
    a(f"s_add_u32 s{sKPF}, s{sT0}, s{sT2}")
    a(f"s_lshr_b32 s{sKQ}, s{sE}, 1")
    a(f"s_mul_i32 s{sWO}, s{sKQ}, {1152*1152}")
    a(f"v_lshrrev_b32 v244, 2, v{vLN}")
    a(f"s_mul_i32 s{sT0}, s{sW}, 144")
    a(f"v_add_u32 v244, s{sT0}, v244")
    a("v_mul_u32_u24 v244, 9216, v244")
    a(f"v_lshrrev_b32 v245, 4, v{vLN}")
    a("v_and_b32 v245, 2, v245")
    a(f"v_and_b32 v246, 3, v{vLN}")
    a("v_xor_b32 v245, v245, v246")
    a(f"v_lshl_add_u32 v{VD0}, v245, 4, v244")
    a(f"s_lshl_b32 s{sT0}, s{sKPS}, 6")
    a(f"v_add_u32 v{VD}, s{sT0}, v{VD0}")
    for i in range(9): a(f"s_mov_b32 s{sDM+i}, {i*16*9216-(i%4)*1024}")
    a(f"s_mul_i32 s{sLW}, s{sW}, 9216")
    def fin_srd(s,sz):
        a(f"s_and_b32 s{s+1}, s{s+1}, 0xffff"); a(f"s_mov_b32 s{s+2}, {sz}"); a(f"s_mov_b32 s{s+3}, 0x00020000")
    def dma(base):
        L=[]
        for sb in range(2):
            srd=(sWG,sWU)[sb]
            for i in range(9):
                pre=f"s_add_u32 m0, {base}, {sb*SLAB+i*1024}" if i%4==0 else None
                L.append((pre,f"buffer_load_dwordx4 v{VD}, s[{srd}:{srd+3}], s{sDM+i} offen offset:{(i%4)*1024} lds"))
        return L
    def emit_vm(L):
        for p,x in L:
            if p: a(p); a("s_nop 0")
            a(x)
    WS=f"s[{sWS}:{sWS+3}]"
    def gupf():
        L=[]
        L.append(f"s_and_b32 s{sT0}, s{sJ}, 28"); L.append(f"s_add_u32 s{sT0}, s{sT0}, s{sW}"); L.append(f"s_mul_i32 s{sT0}, s{sT0}, 54")
        L.append(f"v_min_u32 v247, 53, v{vLN}"); L.append(f"v_add_u32 v247, s{sT0}, v247")
        L.append("v_mul_u32_u24 v248, 43691, v247"); L.append("v_lshrrev_b32 v248, 17, v248")
        L.append("v_mul_u32_u24 v249, 3, v248"); L.append("v_sub_u32 v247, v247, v249")
        L.append("v_mul_u32_u24 v248, 9216, v248"); L.append("v_lshl_add_u32 v247, v247, 7, v248")
        L.append(f"s_min_u32 s{sT0}, s{sKPS}, s{sKPF}"); L.append(f"s_lshr_b32 s{sT0}, s{sT0}, 1"); L.append(f"s_lshl_b32 s{sT0}, s{sT0}, 7")
        L.append(f"v_add_u32 v247, s{sT0}, v247")
        return L,[(None,f"buffer_load_dword v248, v247, s[{sWG}:{sWG+3}], 0 offen {OPT.get('pfp','')}"),(None,f"buffer_load_dword v249, v247, s[{sWU}:{sWU+3}], 0 offen {OPT.get('pfp','')}")]
    Qr=208
    qloads=[(None,f"buffer_load_dwordx4 v[{Qr+4*j}:{Qr+4*j+3}], v{vQO}, s[{sQO}:{sQO+3}], 0 offen offset:{384*j} nt") for j in range(3)]
    a("s_cmp_ge_u32 s2, 144")
    a(f"s_cbranch_scc1 {name}_mod")
    CS=4160; XS=4640; CB=2*SLAB; XB=CB+16*CS
    sG=64; sD=65
    a(f"s_mul_i32 s{sG}, s{sE}, 18"); a(f"s_add_u32 s{sG}, s{sG}, s{sJ}")
    a(f"s_lshl_b32 s{sT0}, s{sG}, 2"); a(f"s_add_u32 s{sD}, s{sT0}, s{sW}")
    a("v_lshrrev_b32 v3, 2, v0")
    a("v_and_b32 v4, 3, v0")
    a("v_mul_u32_u24 v5, 9216, v3")
    a(f"v_add_u32 v8, s{sT0}, v4")
    a("v_lshl_add_u32 v5, v8, 4, v5")
    a(f"v_mul_u32_u24 v8, {XS}, v4")
    a("v_lshl_add_u32 v8, v3, 4, v8")
    a(f"v_add_u32 v8, {XB+512}, v8")
    a(f"v_subrev_u32 v14, 16, v{VL}")
    a(f"s_lshl_b32 s{sT0}, s{sD}, 1")
    a(f"v_mov_b32 v10, s{sT0}")
    a("s_waitcnt lgkmcnt(0)")
    a(f"s_lshl_b32 s{sT0}, s{sD}, 12")
    a(f"s_add_u32 s52, s60, s{sT0}"); a("s_addc_u32 s53, s61, 0"); fin_srd(52,4096)
    XL=16; HL=32
    for i in range(4):
        a(f"buffer_load_dwordx4 v[{HL+8*i}:{HL+8*i+3}], v{VL}, s[52:55], 0 offen offset:{1024*i} {OPT.get('hld','')}")
        a(f"buffer_load_dwordx2 v[{HL+8*i+4}:{HL+8*i+5}], v{VL}, s[52:55], 0 offen offset:{1024*i+16} {OPT.get('hld','')}")
    a(f"buffer_load_dwordx2 v[{HL+36}:{HL+37}], v14, s[52:55], 0 offen")
    fin_srd(sWS,WSEND)
    for i in range(4):
        a(f"s_mov_b32 s{sT0}, {XT+i*64*9216}")
        a(f"buffer_load_dwordx4 v[{XL+4*i}:{XL+4*i+3}], v5, {WS}, s{sT0} offen")
    a("s_mov_b32 s56, s62"); a("s_mov_b32 s57, s63"); fin_srd(56,SZ['ssmD'])
    a("buffer_load_ushort v11, v10, s[56:59], 0 offen")
    for s_,sz in ((sQO,SZ['q']),(sWG,SZ['wg']),(sWU,SZ['wu']),(sWD,SZ['wd'])): fin_srd(s_,sz)
    for i in range(4): a(f"v_mov_b32 v{HL+32+i}, 0")
    a(f"s_mul_i32 s{sT0}, s{sW}, {XS}"); a(f"s_add_u32 s{sT0}, s{sT0}, {XB}")
    a(f"v_add_u32 v12, s{sT0}, v{VL}")
    a("s_mov_b32 exec_hi, 0")
    a(f"ds_write_b128 v12, v[{HL+32}:{HL+35}]")
    a("s_mov_b64 exec, -1")
    a(f"s_mul_i32 s{sT1}, s{sW}, {4*CS}"); a(f"s_add_u32 s{sT1}, s{sT1}, {CB}")
    a(f"v_add_u32 v13, s{sT1}, v{VL}")
    a(f"v_and_b32 v2, 15, v{vLN}")
    a(f"v_lshrrev_b32 v15, 4, v{vLN}")
    a("v_lshlrev_b32 v3, 1, v2"); a("v_sub_u32 v3, v3, v15"); a("v_add_u32 v3, 5, v3")
    a(f"v_lshl_add_u32 v3, v3, 4, s{sT0}")
    a("v_add_u32 v4, 1, v2"); a("v_and_b32 v5, 3, v4"); a("v_sub_u32 v4, v4, v5")
    a("v_lshl_add_u32 v4, v15, 3, v4"); a("v_lshlrev_b32 v4, 1, v4")
    a(f"v_mul_u32_u24 v5, {CS}, v5")
    a(f"v_add3_u32 v4, v4, v5, s{sT1}")
    a("v_lshlrev_b32 v12, 9, v15"); a("v_lshl_add_u32 v12, v2, 3, v12")
    a(f"s_lshl_b32 s{sT0}, s{sW}, 1"); a(f"s_add_u32 s{sT0}, s{sT0}, {CB}")
    a(f"v_add_u32 v12, s{sT0}, v12")
    T=72
    def copies(base, off, tset):
        t=T+tset*12
        a(f"ds_write_b128 v13, v[{base}:{base+3}] offset:{off}")
        for q in range(4): a(f"v_alignbit_b32 v{t+q}, v{base+q+1}, v{base+q}, 16")
        a(f"ds_write_b128 v13, v[{t}:{t+3}] offset:{off+CS}")
        for q in range(4): a(f"v_mov_b32 v{t+4+q}, v{base+q+1}")
        a(f"ds_write_b128 v13, v[{t+4}:{t+7}] offset:{off+2*CS}")
        for q in range(4): a(f"v_alignbit_b32 v{t+8+q}, v{base+q+2}, v{base+q+1}, 16")
        a(f"ds_write_b128 v13, v[{t+8}:{t+11}] offset:{off+3*CS}")
    for i in range(4):
        a(f"s_waitcnt vmcnt({12-2*i})")
        if i==0: stamp('h')
        copies(HL+8*i, 32+1024*i, i&1)
    a("s_waitcnt vmcnt(5)")
    a("s_mov_b64 exec, 3")
    copies(HL+32, 0, 0)
    a("s_mov_b64 exec, -1")
    for i in range(4):
        a(f"s_waitcnt vmcnt({4-i})")
        a(f"ds_write_b128 v8, v[{XL+4*i}:{XL+4*i+3}] offset:{1024*i}")
    a("s_waitcnt vmcnt(0)")
    DF=96
    a("v_lshl_add_u32 v5, v15, 3, v2"); a("v_sub_u32 v5, 15, v5")
    a("v_and_b32 v1, 1, v5"); a("v_lshlrev_b32 v1, 4, v1"); a("v_lshlrev_b32 v1, v1, v11")
    a("v_ashrrev_i32 v5, 1, v5")
    for q in range(4): a(f"v_cmp_eq_u32 s[{52+2*q}:{53+2*q}], {q}, v5")
    a("s_nop 0")
    for q in range(4): a(f"v_cndmask_b32 v{DF+q}, 0, v1, s[{52+2*q}:{53+2*q}]")
    a("s_waitcnt lgkmcnt(0)")
    a("s_barrier")
    stamp('cv0')
    CA=100
    def xreg(buf,w): return f"v[{132+4*w}:{132+4*w+3}]" if buf==0 else f"a[{4*w}:{4*w+3}]"
    def hreg(buf,u,half=None):
        b = 164+4*u if buf==0 else 32+4*u
        p = "v" if buf==0 else "a"
        if half is None: return f"{p}[{b}:{b+3}]"
        return f"{p}[{b+2*half}:{b+2*half+1}]"
    def creads(p):
        buf=p&1; L=[]
        for z in range(8):
            L.append(f"ds_read_b128 {xreg(buf,7-z)}, v3 offset:{512*(7-z)+64*(7-p)}")
            L.append(f"ds_read_b64 {hreg(buf,z,0)}, v4 offset:{512*z+64*p}")
            L.append(f"ds_read_b64 {hreg(buf,z,1)}, v4 offset:{512*z+64*p+8}")
        return L
    for x in creads(0): a(x)
    pl,pld=gupf()
    for x in pl: a(x)
    emit_vm(qloads+(pld if OPT.get('pf',1) else []))
    a("s_waitcnt lgkmcnt(0)")
    mf=[]; reads={}; sc={}
    for p in range(8):
        buf=p&1; base=len(mf)
        if p==0:
            for c in range(8): mf.append(f"v_mfma_f32_16x16x32_bf16 v[{CA+4*c}:{CA+4*c+3}], {xreg(0,c)}, v[{DF}:{DF+3}], 0")
        for c in range(7,-1,-1):
            for u in range(c+1):
                acc=f"v[{CA+4*c}:{CA+4*c+3}]"
                mf.append(f"v_mfma_f32_16x16x32_bf16 {acc}, {xreg(buf,c-u)}, {hreg(buf,u)}, {acc}")
        if p<7:
            for k,x in enumerate(creads(p+1)): reads[base+k]=x
            sc[len(mf)-1]=["s_waitcnt lgkmcnt(0)"]
    cv=dma(f"s{sLW}")
    D0=OPT.get('d0',110); D1=OPT.get('d1',10)
    print("conv",schedule(a,mf,reads,sc,[(p,x,D0+D1*i) for i,(p,x) in enumerate(cv)],[],[]))
    stamp('cv1')
    a("s_barrier")
    for c in range(7,-1,-1):
        a(f"v_cvt_pk_bf16_f32 v{16+2*c}, v{CA+4*c}, v{CA+4*c+1}")
        a(f"v_cvt_pk_bf16_f32 v{17+2*c}, v{CA+4*c+2}, v{CA+4*c+3}")
        a(f"ds_write_b16 v12, v{16+2*c} offset:{2048*c}")
        a(f"ds_write_b16_d16_hi v12, v{16+2*c} offset:{2048*c+128}")
        a(f"ds_write_b16 v12, v{17+2*c} offset:{2048*c+256}")
        a(f"ds_write_b16_d16_hi v12, v{17+2*c} offset:{2048*c+384}")
    a("v_lshlrev_b32 v5, 4, v0"); a(f"v_add_u32 v5, {CB}, v5")
    a("v_lshrrev_b32 v8, 3, v0"); a("v_mul_u32_u24 v8, 18432, v8")
    a(f"v_lshl_add_u32 v8, v{vN}, 4, v8")
    a(f"s_lshl_b32 s{sT0}, s{sG}, 7"); a(f"v_add_u32 v8, s{sT0}, v8")
    a("s_waitcnt lgkmcnt(0)")
    a("s_barrier")
    for i in range(4): a(f"ds_read_b128 v[{32+4*i}:{35+4*i}], v5 offset:{4096*i}")
    for i in range(4):
        a(f"s_mov_b32 s{sT0}, {YO+i*32*18432}")
        a(f"s_waitcnt lgkmcnt({3-i})")
        for q in range(4): a(f"v_min_u32 v{32+4*i+q}, 0xfffffffe, v{32+4*i+q}")
        a(f"buffer_store_dwordx4 v[{32+4*i}:{35+4*i}], v8, {WS}, s{sT0} offen sc1")
    a("s_barrier")
    a(f"s_branch {name}_ln")
    a.label(f"{name}_mod")
    a(f"s_sub_u32 s{sT0}, s2, 144")
    a(f"s_and_b32 s{sT1}, s{sT0}, 7"); a(f"s_lshr_b32 s{sT2}, s{sT0}, 4"); a(f"s_lshl_b32 s{sT2}, s{sT2}, 3")
    a(f"s_add_u32 s{sT1}, s{sT1}, s{sT2}"); a(f"s_lshl_b32 s{sT1}, s{sT1}, 1")
    a(f"s_bfe_u32 s{sT2}, s{sT0}, 0x10003"); a(f"s_add_u32 s{sT1}, s{sT1}, s{sT2}")
    a(f"s_cmp_ge_u32 s{sT0}, 96"); a(f"s_cselect_b32 s{sG}, s{sT0}, s{sT1}")
    a("v_lshrrev_b32 v1, 2, v0"); a("v_and_b32 v2, 3, v0")
    a("v_lshlrev_b32 v4, 1, v1")
    a("v_mul_u32_u24 v5, 6912, v1"); a("v_lshl_add_u32 v5, v2, 4, v5")
    a(f"s_lshl_b32 s{sT0}, s{sG}, 6"); a(f"v_add_u32 v5, s{sT0}, v5")
    a("s_waitcnt lgkmcnt(0)")
    a("s_mov_b32 s52, s60"); a("s_mov_b32 s53, s61"); fin_srd(52,SZ['c'])
    a("s_mov_b32 s56, s62"); a("s_mov_b32 s57, s63"); fin_srd(56,SZ['wmod'])
    for s_,sz in ((sWS,WSEND),(sQO,SZ['q']),(sWG,SZ['wg']),(sWU,SZ['wu']),(sWD,SZ['wd'])): fin_srd(s_,sz)
    a(f"s_cmp_ge_u32 s{sG}, 108")
    a(f"s_cbranch_scc1 {name}_spare")
    SV=16; WL=28; TM=64; AC=76
    for i in range(9): a(f"buffer_load_ushort v{SV+i}, v4, s[52:55], 0 offen offset:{128*i}")
    for i in range(9):
        a(f"s_mov_b32 s{sT0}, {i*64*6912}")
        a(f"buffer_load_dwordx4 v[{WL+4*i}:{WL+3+4*i}], v5, s[56:59], s{sT0} offen nt")
    a(f"s_mov_b32 s{sT2}, 0xffff0000")
    a(f"s_mov_b32 s{sT1}, 0xbfb8aa3b")
    a("s_waitcnt vmcnt(9)")
    stamp('h')
    for i in range(9): a(f"v_lshlrev_b32 v{SV+i}, 16, v{SV+i}")
    for i in range(9): a(f"v_mul_f32 v{TM+i}, s{sT1}, v{SV+i}")
    for i in range(9): a(f"v_exp_f32 v{TM+i}, v{TM+i}")
    for i in range(9): a(f"v_add_f32 v{TM+i}, 1.0, v{TM+i}")
    for i in range(9): a(f"v_rcp_f32 v{TM+i}, v{TM+i}")
    for i in range(9): a(f"v_mul_f32 v{SV+i}, v{SV+i}, v{TM+i}")
    for i in range(9): a(f"v_cvt_pk_bf16_f32 v{SV+i}, v{SV+i}, v{SV+i}")
    for i in range(9): a(f"v_lshlrev_b32 v{SV+i}, 16, v{SV+i}")
    for i in range(9):
        a(f"s_waitcnt vmcnt({8-i})")
        for q in range(4):
            a(f"v_lshlrev_b32 v{TM+2*q}, 16, v{WL+4*i+q}")
            a(f"v_and_b32 v{TM+1+2*q}, s{sT2}, v{WL+4*i+q}")
        for j in range(8):
            a(f"v_mul_f32 v{AC+j}, v{TM+j}, v{SV+i}" if i==0 else f"v_fmac_f32 v{AC+j}, v{TM+j}, v{SV+i}")
    pl,pld=gupf()
    for x in pl: a(x)
    emit_vm(qloads+(pld if OPT.get('pf',1) else []))
    a("v_lshlrev_b32 v1, 5, v0"); a(f"v_add_u32 v1, {CB}, v1")
    a(f"ds_write_b128 v1, v[{AC}:{AC+3}]")
    a(f"ds_write_b128 v1, v[{AC+4}:{AC+7}] offset:16")
    a("s_waitcnt lgkmcnt(0)")
    a("s_barrier")
    stamp('cv0')
    a(f"s_cmp_lg_u32 s{sW}, 0")
    a(f"s_cbranch_scc1 {name}_modx")
    a("v_and_b32 v1, 31, v0"); a("v_lshlrev_b32 v1, 2, v1")
    a("v_lshrrev_b32 v2, 5, v0"); a("v_lshl_add_u32 v2, v2, 12, v1"); a(f"v_add_u32 v2, {CB}, v2")
    for i in range(32): a(f"ds_read_b32 v{16+i}, v2 offset:{128*i}")
    a("s_waitcnt lgkmcnt(0)")
    for st in (16,8,4,2,1):
        for i in range(st): a(f"v_add_f32 v{16+i}, v{16+i}, v{16+i+st}")
    a("v_mov_b32 v17, v16")
    a("v_permlane32_swap_b32 v16, v17")
    a("v_add_f32 v16, v16, v17")
    a("v_cvt_pk_bf16_f32 v16, v16, v16"); a("v_lshlrev_b32 v16, 16, v16")
    a(f"s_sub_u32 s{sT0}, s{sG}, 18"); a(f"s_cmp_lt_u32 s{sT0}, 18"); a(f"s_cselect_b32 s{sT1}, 1.0, 0")
    a(f"s_sub_u32 s{sT0}, s{sG}, 72"); a(f"s_cmp_lt_u32 s{sT0}, 18"); a(f"s_cselect_b32 s{sT1}, 1.0, s{sT1}")
    a(f"v_add_f32 v16, s{sT1}, v16")
    a("v_cvt_pk_bf16_f32 v16, v16, v16"); a("v_lshlrev_b32 v16, 16, v16")
    a(f"s_lshl_b32 s{sT0}, s{sG}, 7"); a(f"s_add_u32 s{sT0}, s{sT0}, {MODF}")
    a("s_mov_b32 exec_hi, 0")
    a(f"buffer_store_dword v16, v1, {WS}, s{sT0} offen sc1")
    a("s_mov_b64 exec, -1")
    a.label(f"{name}_modx")
    a("s_barrier")
    a(f"s_branch {name}_spare2")
    a.label(f"{name}_spare")
    for x in pl: a(x)
    emit_vm(qloads+(pld if OPT.get('pf',1) else []))
    a.label(f"{name}_spare2")
    emit_vm(dma(f"s{sLW}"))
    stamp('cv1')
    a.label(f"{name}_ln")
    stamp('t0')
    a(f"s_cmp_eq_u32 s{sW}, 3")
    a(f"s_cbranch_scc1 {name}_w3")
    Yr=64; Q=76; Yv=100; H=124; S=148; M0=160; M1=220; M2=32
    vS0,vS1,vMA=196,197,198
    a(f"s_mov_b32 s{sT2}, 0xffff0000")
    def unpack(dst, src, n):
        for q in range(n):
            a(f"v_lshlrev_b32 v{dst+2*q}, 16, v{src+q}")
            a(f"v_and_b32 v{dst+2*q+1}, s{sT2}, v{src+q}")
    def pk(op,d,x,y,z=None,mods=""):
        f=lambda r: r if isinstance(r,str) else f"v[{r}:{r+1}]"
        a(f"{op} {f(d)}, {f(x)}, {f(y)}" + (f", {f(z)}" if z is not None else "") + (" "+mods if mods else ""))
    def stats(src, slot):
        pk("v_pk_add_f32",S,src,src+2)
        pk("v_pk_mul_f32",S+2,src,src)
        pk("v_pk_mul_f32",S+4,src+2,src+2)
        for j in range(2,12):
            pk("v_pk_add_f32",S,S,src+2*j)
            pk("v_pk_fma_f32",S+2+2*(j&1),src+2*j,src+2*j,S+2+2*(j&1))
        pk("v_pk_add_f32",S+2,S+2,S+4)
        a(f"v_add_f32 v{S}, v{S}, v{S+1}")
        a(f"v_add_f32 v{S+1}, v{S+2}, v{S+3}")
        for z in range(2): a(f"v_add_f32 v{S+z}, v{S+z}, v{S+z} row_ror:8")
        for pl in ("v_permlane16_swap_b32","v_permlane32_swap_b32"):
            for z in range(2): a(f"v_mov_b32 v{S+2+z}, v{S+z}")
            for z in range(2): a(f"{pl} v{S+z}, v{S+2+z}")
            pk("v_pk_add_f32",S,S,S+2)
        a(f"ds_write_b64 v{vS0}, v[{S}:{S+1}] offset:{slot*192}")
    def stats_finish(slot):
        for w in range(3): a(f"ds_read_b64 v[{S+4+2*w}:{S+5+2*w}], v{vS1} offset:{slot*192+64*w}")
        a("s_waitcnt lgkmcnt(0)")
        pk("v_pk_add_f32",S+4,S+4,S+6); pk("v_pk_add_f32",S+4,S+4,S+8)
        a(f"s_mov_b32 s{sT0}, 0x3ae38e39")
        a(f"v_mul_f32 v{S}, s{sT0}, v{S+4}")
        a(f"v_mul_f32 v{S+2}, s{sT0}, v{S+5}")
        a(f"v_fma_f32 v{S+2}, -v{S}, v{S}, v{S+2}")
        a(f"v_max_f32 v{S+2}, 0, v{S+2}")
        a(f"v_add_f32 v{S+2}, 0x3727c5ac, v{S+2}")
        a(f"v_rsq_f32 v{S+2}, v{S+2}")
        a(f"v_mul_f32 v{S}, -1.0, v{S}")
        a(f"v_mul_f32 v{S}, v{S}, v{S+2}")
        a(f"v_mov_b32 v{S+3}, v{S+2}")
        a(f"v_mov_b32 v{S+1}, v{S}")
    a(f"s_lshl_b32 s{sT0}, s{sW}, 6"); a(f"s_add_u32 s{sT0}, s{sT0}, {LST}")
    a(f"v_lshl_add_u32 v{vS0}, v{vN}, 3, s{sT0}")
    a(f"v_lshlrev_b32 v{vS1}, 3, v{vN}"); a(f"v_add_u32 v{vS1}, {LST}, v{vS1}")
    a(f"v_lshlrev_b32 v{vMA}, 5, v{vCL}"); a(f"v_add_u32 v{vMA}, {LMOD}, v{vMA}")
    a("s_waitcnt vmcnt(18)")
    unpack(Q, Qr, 12)
    stats(Q, 0)
    a("s_waitcnt lgkmcnt(0)")
    a("s_barrier")
    def modrd(v,dst):
        for j in range(3):
            for hh in range(2): a(f"ds_read_b128 v[{dst+8*j+4*hh}:{dst+8*j+4*hh+3}], v{vMA} offset:{v*2304+768*j+16*hh}")
    stats_finish(0)
    modrd(1,M0); modrd(0,M1); modrd(2,M2)
    for j in range(12): pk("v_pk_fma_f32",H+2*j,Q+2*j,S+2,S)
    a("s_waitcnt lgkmcnt(6)")
    for j in range(12): pk("v_pk_fma_f32",H+2*j,H+2*j,M0+2*j,M1+2*j)
    a("s_waitcnt lgkmcnt(0)")
    for j in range(12): pk("v_pk_mul_f32",H+2*j,H+2*j,M2+2*j)
    modrd(4,M0); modrd(3,M1)
    for j in range(3): a(f"s_add_u32 s{36+j}, s{sSB}, {YO+6144*j}")
    SETUP(a)
    stamp('ln1')
    a(f"s_mov_b32 s{sSP}, 0")
    a.label(f"{name}_yc")
    a(f"buffer_load_dwordx2 v[{Yr}:{Yr+1}], v{vYO}, {WS}, s36 offen sc1")
    a(f"s_add_u32 s{sSP}, s{sSP}, 1")
    a("s_waitcnt vmcnt(0)")
    a(f"v_cmp_eq_u32 vcc, -1, v{Yr}")
    a(f"s_cmp_ge_u32 s{sSP}, {SPIN}")
    a(f"s_cbranch_scc1 {name}_ya")
    a(f"s_cbranch_vccz {name}_ya")
    a("s_sleep 2")
    a(f"s_branch {name}_yc")
    a.label(f"{name}_ya")
    for j in range(3):
        a(f"buffer_load_dwordx2 v[{Yr+4*j}:{Yr+4*j+1}], v{vYO}, {WS}, s{36+j} offen sc1")
        a(f"buffer_load_dwordx2 v[{Yr+4*j+2}:{Yr+4*j+3}], v{vYO}, {WS}, s{36+j} offen offset:128 sc1")
    a(f"s_add_u32 s{sSP}, s{sSP}, 1")
    a("s_waitcnt vmcnt(0)")
    a(f"v_max3_u32 v{S}, v{Yr}, v{Yr+1}, v{Yr+2}")
    a(f"v_max3_u32 v{S+1}, v{Yr+3}, v{Yr+4}, v{Yr+5}")
    a(f"v_max3_u32 v{S}, v{S}, v{Yr+6}, v{Yr+7}")
    a(f"v_max3_u32 v{S+1}, v{S+1}, v{Yr+8}, v{Yr+9}")
    a(f"v_max3_u32 v{S}, v{S}, v{Yr+10}, v{Yr+11}")
    a(f"v_max_u32 v{S}, v{S}, v{S+1}")
    a(f"v_cmp_eq_u32 vcc, -1, v{S}")
    a(f"s_cmp_ge_u32 s{sSP}, {SPIN}")
    a(f"s_cbranch_scc1 {name}_yx")
    a("s_nop 1")
    a(f"s_cbranch_vccnz {name}_ya")
    a.label(f"{name}_yx")
    stamp('y')
    a(f"s_mov_b32 s{sT2}, 0xffff0000")
    unpack(Yv, Yr, 12)
    for j in range(12): pk("v_pk_fma_f32",H+2*j,H+2*j,Yv+2*j,Q+2*j)
    for q in range(12): a(f"v_cvt_pk_bf16_f32 v{Qr+q}, v{H+2*q}, v{H+2*q+1}")
    unpack(Q, Qr, 12)
    stats(Q, 1)
    a("s_waitcnt lgkmcnt(0)")
    a("s_barrier")
    stats_finish(1)
    for j in range(12): pk("v_pk_fma_f32",H+2*j,Q+2*j,S+2,S)
    for j in range(12): pk("v_pk_fma_f32",H+2*j,H+2*j,M0+2*j,M1+2*j)
    for j in range(3):
        for q in range(4): a(f"v_cvt_pk_bf16_f32 v{Yr+4*j+q}, v{H+8*j+2*q}, v{H+8*j+2*q+1}")
        a(f"s_add_u32 s{sT0}, s36, {H2-YO+6144*j}")
        a(f"buffer_store_dwordx4 v[{Yr+4*j}:{Yr+4*j+3}], v{vHO}, {WS}, s{sT0} offen sc1")
    for j in range(3):
        a(f"s_add_u32 s{sT0}, s36, {X1-YO+6144*j}")
        a(f"buffer_store_dwordx2 v[{Qr+4*j}:{Qr+4*j+1}], v{vYO}, {WS}, s{sT0} offen sc1")
        a(f"buffer_store_dwordx2 v[{Qr+4*j+2}:{Qr+4*j+3}], v{vYO}, {WS}, s{sT0} offen offset:128 sc1")
    a("s_waitcnt vmcnt(0)")
    stamp('lnd')
    for x in flagstore(F3,"1"): a(x)
    a("s_barrier")
    a(f"s_branch {name}_lnj")
    a.label(f"{name}_w3")
    a(f"s_mov_b32 s{sSP}, 0")
    MT=64
    for q in range(4): a(f"v_mov_b32 v{MT+52+q}, 0")
    a(f"v_add_u32 v1, {LMOD}, v{VL}")
    a.label(f"{name}_mp")
    for i in range(14):
        if i%4==0: a(f"s_mov_b32 s{sT0}, {MODF+i*1024}")
        if i==13: a("s_mov_b32 exec_hi, 0")
        a(f"buffer_load_dwordx4 v[{MT+4*i}:{MT+4*i+3}], v{VL}, {WS}, s{sT0} offen offset:{(i%4)*1024} sc1")
    a("s_mov_b64 exec, -1")
    a(f"s_add_u32 s{sSP}, s{sSP}, 1")
    a("s_waitcnt vmcnt(0)")
    a(f"v_max_u32 v2, v{MT}, v{MT+1}")
    for i in range(1,28): a(f"v_max3_u32 v2, v2, v{MT+2*i}, v{MT+2*i+1}")
    a("v_cmp_eq_u32 vcc, -1, v2")
    a(f"s_cmp_ge_u32 s{sSP}, {SPIN}")
    a(f"s_cbranch_scc1 {name}_mx")
    a(f"s_cbranch_vccz {name}_mx")
    a("s_sleep 4")
    a(f"s_branch {name}_mp")
    a.label(f"{name}_mx")
    for i in range(14):
        if i==13: a("s_mov_b32 exec_hi, 0")
        a(f"ds_write_b128 v1, v[{MT+4*i}:{MT+4*i+3}] offset:{1024*i}")
    a("s_mov_b64 exec, -1")
    a(f"s_mul_i32 s{sT0}, s{sW}, {144*9216}")
    a(f"v_subrev_u32 v196, s{sT0}, v{VD0}")
    a(f"s_lshl_b32 s{sT0}, s{sKPF}, 6"); a(f"v_add_u32 v196, s{sT0}, v196")
    a("s_waitcnt lgkmcnt(0)")
    a("s_barrier")
    n=0
    for i in range(36):
        for sb in range(2):
            srd=(sWG,sWU)[sb]
            a(f"s_mov_b32 m0, {(2+sb)*SLAB+i*1024}")
            a(f"s_mov_b32 s{sT0}, {i*16*9216}")
            a(f"buffer_load_dwordx4 v196, s[{srd}:{srd+3}], s{sT0} offen lds")
            n+=1
            if n==OPT.get('w3a',24):
                SETUP(a)
                stamp('ln1'); stamp('y')
                a("s_barrier")
                stamp('lnd')
                a("s_barrier")
            if n>48 and n%8==0: a("s_waitcnt vmcnt(44)")
    a.label(f"{name}_lnj")
    a(f"s_mov_b32 s{sT1}, {F3}")
    a(f"s_mov_b32 s{sSP}, 0")
    a.label(f"{name}_p3")
    a(f"buffer_load_dword v{VP}, v{VPA}, {WS}, s{sT1} offen sc1")
    a(f"s_add_u32 s{sSP}, s{sSP}, 1")
    a("s_waitcnt vmcnt(0)")
    a(f"v_cmp_gt_u32 vcc, 1, v{VP}")
    a(f"s_cmp_ge_u32 s{sSP}, {SPIN}")
    a(f"s_cbranch_scc1 {name}_p3x")
    a("s_nop 2")
    a(f"s_cbranch_vccnz {name}_p3")
    a.label(f"{name}_p3x")
    stamp('f3')
    def bload(sl,ks):
        v = VL if ks<4 else VOF-1+ks//4
        return (None,f"buffer_load_dwordx4 {breg(ks*4+sl)}, v{v}, {WS}, s{sH2+sl} offen offset:{(ks%4)*1024} sc1")
    b01=[bload(sl,ks) for ks in range(18) for sl in (0,1)]
    b23=[bload(sl,ks) for ks in range(18) for sl in (2,3)]
    emit_vm(b01[:8])
    a("s_barrier")
    a("v_and_b32 v39, 3, v205")
    a(f"s_lshr_b32 s{sT0}, s{sRT2}, 1"); a(f"s_lshl_b32 s{sT0}, s{sT0}, 2")
    a(f"v_add_u32 v39, s{sT0}, v39")
    a(f"s_lshl_b32 s{sT0}, s{sKQ}, 1"); a(f"s_add_u32 s{sT0}, s{sT0}, s{sKH}")
    a(f"v_lshl_add_u32 v39, v39, 3, s{sT0}")
    a(f"s_and_b32 s{sT0}, s{sRT2}, 1"); a(f"s_lshl_b32 s{sT0}, s{sT0}, 1"); a(f"s_add_u32 s{sT0}, s{sT0}, s{sRH}")
    a(f"v_lshl_add_u32 v39, v39, 2, s{sT0}")
    a(f"v_mul_u32_u24 v{VPA}, {FSTR}, v39")
    def areads(t,n,sb,buf):
        L=[]
        for j in range(2):
            d=AF+buf*8+j*4
            for hf in range(2):
                L.append(f"ds_read_b64_tr_b16 v[{d+2*hf}:{d+2*hf+1}], v{VA+sb*2+t} offset:{(2*n+j)*2048+hf*256}")
        return L
    def areads2(st,dt,buf):
        L=[]; slot=(st+2)%4
        for j in range(2):
            d=AF+buf*8+j*4
            for hf in range(2):
                L.append(f"ds_read_b64_tr_b16 v[{d+2*hf}:{d+2*hf+1}], v{VA2+(slot>>1)} offset:{(slot&1)*SLAB+(32*j+16*hf)*288+32*dt}")
        return L
    def mfmas(t,n,sb,buf,slots):
        L=[]
        for sl in slots:
            acc=ACC+t*32+sb*16+sl*4
            for j in range(2):
                d=AF+buf*8+j*4
                c="0" if (n==0 and j==0) else f"v[{acc}:{acc+3}]"
                L.append(f"v_mfma_f32_16x16x32_bf16 v[{acc}:{acc+3}], v[{d}:{d+3}], {breg((2*n+j)*4+sl)}, {c}")
        return L
    def gelu(t,slots,store,e0):
        chains=[]
        if OPT.get('nogelu'): return chains
        if OPT.get('nostore'): store=False
        for bi,sl in enumerate(slots):
            G=ACC+t*32+sl*4; U=G+16; last=[]
            for r in range(4):
                o1=Op(f"v_mul_f32 v{{T}}, v{G+r}, v{G+r}","V",alloc=True,earliest=e0)
                o2=Op(f"v_fma_f32 v{{T}}, v{{T}}, v{VC1}, s{sC0}","V",[o1])
                o3=Op(f"v_mul_f32 v{{T}}, v{{T}}, v{G+r}","V",[o2])
                o4=Op(f"v_exp_f32 v{{T}}, v{{T}}","T",[o3])
                o5=Op(f"v_add_f32 v{{T}}, 1.0, v{{T}}","V",[o4])
                o6=Op(f"v_rcp_f32 v{{T}}, v{{T}}","T",[o5])
                o7=Op(f"v_mul_f32 v{U+r}, v{U+r}, v{G+r}","V",[o3],earliest=e0+3)
                o8=Op(f"v_mul_f32 v{U+r}, v{U+r}, v{{T}}","V",[o6,o7],free=True)
                chains.append([o1,o2,o3,o4,o7,o5,o6,o8]); last.append(o8)
                if r&1:
                    cv=Op(f"v_cvt_pk_bf16_f32 v{HP+sl*4+2*t+(r>>1)}, v{U+r-1}, v{U+r}","V",last[-2:])
                    chains.append([cv]); last.append(cv)
            if store:
                cvs=[x for x in last if "cvt" in x.fmt]
                chains.append([Op(f"buffer_store_dwordx4 v[{HP+sl*4}:{HP+sl*4+3}], v{VH}, {WS}, s{sHC+sl} offen {OPT.get('hst','sc1')}","D",cvs)])
        return chains
    hg=[0]
    def block(t, slots, nxt, chains, vms, sc_extra, bar_at_end, early_last=False, vwait=None, mark=None):
        per=2*len(slots)
        mf=[]; reads={}; sc={}
        for h in range(18):
            n,sb=h//2,h%2
            buf=(hg[0]+h)%3
            base=len(mf)
            mf+=mfmas(t,n,sb,buf,slots)
            rl=nxt(h+2,(hg[0]+h+2)%3)
            early = bar_at_end and h==15
            for k,x in enumerate(rl):
                pos = k if (per==4 or early) else 2*k
                if per==4 and early: pos=k//2
                reads[base+pos]=(reads[base+pos]+"\n"+x) if base+pos in reads else x
            w="s_waitcnt lgkmcnt(4)" if per==8 else "s_waitcnt lgkmcnt(3)"
            if vwait and vwait(h+1) is not None: w=w.replace("s_waitcnt",f"s_waitcnt vmcnt({vwait(h+1)})")
            if bar_at_end and h==15:
                sc.setdefault(base+per-1,[]).extend(["s_waitcnt lgkmcnt(0)" if bar_at_end==2 else f"s_waitcnt vmcnt({1 if OPT.get('wdpf') else 0}) lgkmcnt(0)","s_barrier"])
            else: sc.setdefault(base+per-1,[]).append(w)
        for g,l in sc_extra.items(): sc.setdefault(g,[]).extend(l)
        def AB(txt):
            if "@B23_" in txt:
                import re
                n=int(re.search(r"@B23_(\d+)",txt).group(1))
                cnt=sum(1 for l in a.l[mark:] if "buffer_" in l)
                txt=re.sub(r"@B23_\d+",str(min(63,36-4*(n+1)+cnt)),txt)
            a(txt)
        st=schedule(AB,mf,reads,sc,vms,chains,TEMPS,allow_vv_from=OPT.get('vv',None),allow_rt=(per==4))
        hg[0]+=18
        return st
    def nxt_same(t):
        def f(h,buf):
            if h<18: return areads(t,h//2,h%2,buf)
            return areads(t^1,(h-18)//2,h%2,buf)
        return f
    NUP=OPT.get('nup',16)
    allb=b01+b23
    emit_vm(allb[8:NUP])
    for h in range(2):
        for x in areads(0,0,h,h): a(x)
    a(f"s_waitcnt vmcnt({NUP-4}) lgkmcnt(4)")
    stamp('b0')
    ex={}
    rest=allb[NUP:]
    n0=36
    for i,(p,x) in enumerate(rest[:n0]): ex.setdefault(2*i+1 if (2*i+1)%4!=3 else 2*i,[]).append(x)
    def vw(h):
        if h>=18 or h%2: return None
        n=h//2
        issued=min(n0,2*h)
        return NUP+issued-4*(n+1)
    print("h0",block(0,(0,1),nxt_same(0),[],[],ex,False,vwait=vw))
    ex1={}
    for i,(p,x) in enumerate(rest[n0:]): ex1.setdefault(3*i+1 if (3*i+1)%4!=3 else 3*i,[]).append(x)
    def tog(t): return [Op(f"v_add_u32 v{VA+sb*2+t}, s{sDEL}, v{VA+sb*2+t}","V",earliest=2) for sb in range(2)]
    a(f"s_mov_b32 s{sDEL}, {2*SLAB}")
    print("h1",block(1,(0,1),nxt_same(1),[[o] for o in tog(0)]+gelu(0,(0,1),False,2),[],ex1,2))
    a(f"s_mov_b32 s{sDB}, s{sLW}")
    a(f"s_mov_b32 s{sIT}, 1")
    PACE=OPT.get('pace',12); PACE2=OPT.get('pace2',7)
    def full_sb(last):
        if not last:
            a(f"s_add_u32 s{sT0}, s{sKPF}, s{sIT}")
            a(f"s_lshl_b32 s{sT1}, s{sT0}, 6")
            a(f"v_add_u32 v{VD}, s{sT1}, v{VD0}")
            vms=[(p,x,PACE*i) for i,(p,x) in enumerate(dma(f"s{sDB}"))] if not OPT.get('nodma') else []
        else:
            vms=[]
            for st in range(2):
                for i in range(9):
                    vms.append((f"s_add_u32 m0, s{sLW}, {((st+2)%4)*SLAB+i*1024}", f"buffer_load_dwordx4 v{VDM[i]}, s[{sWD}:{sWD+3}], s{sT2 if st else sIT} offen lds",PACE2*(st*9+i)))
            a(f"s_add_u32 s{sIT}, s{sWO}, {PORD[0]*32*1152}")
            a(f"s_add_u32 s{sKPF}, s{sKPF}, 4")
            a(f"s_add_u32 s{sT2}, s{sWO}, {PORD[1]*32*1152}")
        mark=len(a.l)
        def vw0(h):
            if last or h>=18 or h%2: return None
            return "@B23_%d"%(h//2)
        v0=[v for v in vms if v[2]<144]; v1=[(p,x,g-144) for p,x,g in vms if g>=144]
        ex0={}
        if not last and OPT.get('wdpf'):
            v1.append((None,f"buffer_load_dword v{VP}, v{VPF}, s[{sWD}:{sWD+3}], 0 offen",v1[-1][2]+4))
        s0=block(0,(0,1,2,3),nxt_same(0),[[o] for o in tog(1)]+gelu(1,(0,1,2,3),True,2),v0,ex0,False,vwait=vw0,mark=mark)
        ex={0:[f"s_add_u32 s{sT1}, s{sKPF}, s{sIT}" if not last else f"s_mov_b32 s{sT1}, s{sKPF}"],1:[f"s_sub_u32 s{sT1}, s{sT1}, 1"],2:[f"s_lshl_b32 s{sT1}, s{sT1}, 10"],
            3:[f"s_mov_b32 s{sHC+2}, s{sHS+2}"],4:[f"s_mov_b32 s{sHC+3}, s{sHS+3}"],5:[f"s_sub_u32 s{sDEL}, 0, s{sDEL}"],
            130:[f"s_sub_u32 s{sDB}, s{sDB}, s{sDEL}"]}
        upd=[Op(f"v_add_u32 v{VH}, s{sT1}, v{VL}","V",earliest=4)]
        tg=tog(0)
        for o in tg: o.earliest=8
        vms=v1
        nx=nxt_same(1)
        if last:
            def nx(h,buf):
                if h<18: return areads(1,h//2,h%2,buf)
                return areads2(0,h-18,buf)
            tg=[]
            ex[8]=[f"s_mov_b32 s{sT0}, {F4}"]
            ex[9]=[f"buffer_load_dword v{VP}, v{VPA}, {WS}, s{sT0} offen sc1"]
            ex[38]=["s_waitcnt vmcnt(0)", f"v_cmp_gt_u32 vcc, 3, v{VP}"]
            ex[40]=[f"s_cbranch_vccnz {name}_sl3", f"{name}_sl3b:"]+flagstore(F4,"4")
            for pos in range(6):
                for sl in range(4): vms.append(b2load(pos,sl)+(max(41,(pos//2+1)*16),))
        s1=block(1,(0,1,2,3),nx,[[o] for o in upd+tg]+gelu(0,(0,1,2,3),False,2),vms,ex,2 if last else True)
        if not last:
            if OPT.get('wdpf'): a(f"v_add_u32 v{VPF}, 0x6c000, v{VPF}")
            for x in flagstore(F4,f"s{sIT}"): a(x)
            a(f"s_add_u32 s{sIT}, s{sIT}, 1")
        print("full",last,s0,s1)
    def b2load(pos,sl):
        kp=PORD[pos//2]+9*(pos&1)
        v = VL if kp<4 else VOF-1+kp//4
        return (None,f"buffer_load_dwordx4 {breg2(pos*4+sl)}, v{v}, {WS}, s{sHL+sl} offen offset:{(kp%4)*1024} sc1")
    a("s_waitcnt vmcnt(32)")
    stamp('loop')
    assert hg[0]%3==0
    if OPT.get('unroll'):
        for it in range(3):
            full_sb(False)
            if it<2: stamp(f'it{it}')
    else:
        a.label(f"{name}_loop")
        full_sb(False)
        a(f"s_cmp_lt_u32 s{sIT}, 4")
        a(f"s_cbranch_scc1 {name}_loop")
    stamp('last')
    full_sb(True)
    seq=[]
    class Rec:
        def __call__(self,txt):
            a(txt)
            for ln in txt.split("\n"):
                if "buffer_" in ln: seq.append(ln.strip())
    def outstanding_after(pred):
        cnt=0
        for ln in reversed(a.l):
            if "buffer_" in ln:
                if pred(ln): return min(cnt,63)
                cnt+=1
        raise Exception("not found")
    def dma2(st):
        L=[]
        for i in range(9):
            L.append((f"s_add_u32 m0, s{sLW}, {((st+2)%4)*SLAB+i*1024}", f"buffer_load_dwordx4 v{VDM[i]}, s[{sWD}:{sWD+3}], s{sDM+st} offen lds ; dma2_{st}"))
        return L
    for st in range(2,9): a(f"s_add_u32 s{sDM+st}, s{sWO}, {PORD[st]*32*1152}")
    tail=gelu(1,(0,1,2,3),True,2)
    a("s_waitcnt vmcnt(%d) lgkmcnt(4)"%outstanding_after(lambda l: breg2(1*4+3)+"," in l and f"s{sHL+3} " in l))
    stamp('g2')
    mf=[]; reads={}; sc={}; vms=[]
    for st in range(9):
        for dt in range(9):
            g=st*9+dt; buf=(hg[0]+g)%3; base=len(mf)
            for sl in range(4):
                acc=ACC2[dt*4+sl]
                for j in range(2):
                    d=AF+buf*8+j*4
                    c="0" if (st==0 and j==0) else f"v[{acc}:{acc+3}]"
                    mf.append(f"v_mfma_f32_16x16x32_bf16 v[{acc}:{acc+3}], v[{d}:{d+3}], {breg2((2*st+j)*4+sl)}, {c}")
            if g+2<81:
                rl=areads2((g+2)//9,(g+2)%9,(hg[0]+g+2)%3)
                for k,x in enumerate(rl): reads[base+2*k]=x
            nout=4 if g+2<81 else 0
            if dt==6 and 0<st<8: sc[base+7]=[f"@WD{st+1} lgkmcnt({nout})","s_barrier"]
            elif dt==8 and st<8: sc[base+7]=[f"@WB{st+1} lgkmcnt({nout})"]
            else: sc[base+7]=[f"s_waitcnt lgkmcnt({nout})"]
    ev=[]
    ev+=[x+(0,) for x in dma2(2)]+[b2load(pos,sl)+(20,) for pos in (6,7) for sl in range(4)]+[x+(40,) for x in dma2(3)]+[b2load(pos,sl)+(60,) for pos in (8,9) for sl in range(4)]
    for st in range(1,6): ev+=[x+(72*st+56,) for x in dma2(st+3)]
    G4,G5=146,380
    ev+=[b2load(pos,sl)+(G4+1,) for pos in (10,11,12,13) for sl in range(4)]
    ev+=[b2load(pos,sl)+(G5+1,) for pos in (14,15,16,17) for sl in range(4)]
    vms=sorted(ev,key=lambda x:x[2])
    def addsc(g,l): sc.setdefault(g,[]).extend(l)
    addsc(72,[f"s_mov_b32 s{sT0}, {F4}"])
    addsc(74,[f"buffer_load_dword v{VP}, v{VPA}, {WS}, s{sT0} offen sc1 ; poll4"])
    addsc(G4-2,["@WP4", f"v_cmp_gt_u32 vcc, 4, v{VP}"])
    addsc(G4,[f"s_cbranch_vccnz {name}_sl4", f"{name}_sl4b:"])
    addsc(220,["@WS"]+flagstore(F4,"5"))
    addsc(G5-50,[f"buffer_load_dword v{VP}, v{VPA}, {WS}, s{sT0} offen sc1 ; poll5"])
    addsc(G5-2,["@WP5", f"v_cmp_gt_u32 vcc, 5, v{VP}"])
    addsc(G5,[f"s_cbranch_vccnz {name}_sl5", f"{name}_sl5b:"])
    def AA(txt):
        if txt.startswith("@WD"):
            k=int(txt[3]); txt=f"s_waitcnt vmcnt({outstanding_after(lambda l: f'dma2_{k}' in l)})"+txt[4:]
            assert sum(1 for l in a.l if f'dma2_{k}' in l)==9
        elif txt.startswith("@WB"):
            k=int(txt[3]); txt=f"s_waitcnt vmcnt({outstanding_after(lambda l: breg2((2*k+1)*4+3)+',' in l and 'load' in l and f's{sHL+3} ' in l)})"+txt[4:]
        elif txt.startswith("@WP"):
            k=txt[3]; txt=f"s_waitcnt vmcnt({outstanding_after(lambda l: 'poll'+k in l)})"
        elif txt.startswith("@WS"):
            assert all(o.gap is not None for ch in tail for o in ch)
            txt=f"s_waitcnt vmcnt({outstanding_after(lambda l: 'store_dword' in l)})"
        a(txt)
    print("g2",schedule(AA,mf,reads,sc,vms,tail,TEMPS))
    stamp('g2end')
    a(f"s_load_dwordx2 s[{sQO}:{sQO+1}], s[0:1], {KA['out']}")
    a("v_and_b32 v38, 63, v0")
    a(f"s_mul_i32 s{sT0}, s{sRH}, {3*SLAB}")
    a(f"v_add_u32 v16, s{sT0}, v{VL}")
    a(f"s_lshl_b32 s{sT0}, s{sRT2}, 3"); a(f"s_lshl_b32 s{sT1}, s{sRH}, 2"); a(f"s_add_u32 s{sT0}, s{sT0}, s{sT1}"); a(f"s_add_u32 s{sIT}, s{sT0}, s{sKQ}")
    a("v_and_b32 v17, 15, v38"); a("v_lshrrev_b32 v18, 4, v38")
    a("v_lshlrev_b32 v19, 7, v18"); a("v_lshl_add_u32 v19, v17, 3, v19")
    a("v_lshlrev_b32 v20, 4, v18")
    a(f"s_lshl_b32 s{sT0}, s{sIT}, 4"); a(f"v_add_u32 v21, s{sT0}, v17")
    a("v_mul_u32_u24 v21, 1152, v21"); a("v_lshl_add_u32 v21, v18, 3, v21")
    a(f"s_mul_i32 s{sH2}, s{sIT}, 18432"); a(f"s_mul_i32 s{sT0}, s{sDS}, 4608"); a(f"s_add_u32 s{sH2}, s{sH2}, s{sT0}"); a(f"s_add_u32 s{sH2}, s{sH2}, {X1}")
    a(f"s_mul_i32 s{sH2+1}, s{sDS}, 576"); a(f"s_add_u32 s{sH2+1}, s{sH2+1}, {MODF+5*2304}")
    a(f"s_mul_i32 s{sH2+2}, s{sDS}, 288")
    a(f"s_lshl_b32 s{sT0}, s2, 2"); a(f"s_add_u32 s{sT0}, s{sT0}, s{sW}"); a(f"s_mul_i32 s{sT0}, s{sT0}, 9216"); a(f"s_add_u32 s{sH2+3}, s{sT0}, {PART}")
    for s in range(1,4):
        a(f"s_xor_b32 s{sT0}, s2, {2*s}"); a(f"s_lshl_b32 s{sT0}, s{sT0}, 2"); a(f"s_add_u32 s{sT0}, s{sT0}, s{sW}")
        a(f"s_mul_i32 s{sT0}, s{sT0}, 9216"); a(f"s_add_u32 s{sHS+s}, s{sT0}, {PART+(s-1)*3072}")
    a("v_min_u32 v22, 2, v38"); a("v_add_u32 v22, 1, v22"); a("v_lshlrev_b32 v22, 1, v22")
    a("v_xor_b32 v22, s2, v22"); a(f"v_lshlrev_b32 v22, 2, v22"); a(f"v_add_u32 v22, s{sW}, v22"); a(f"v_mul_u32_u24 v{VPA}, {FSTR}, v22")
    a(f"s_cmp_eq_u32 s{sKH}, 0")
    a(f"s_cbranch_scc1 {name}_kh0")
    def fin(keep, send, woff, roff):
        nk=len(keep)
        XR=96; GB=108; RB=32
        for u,dt in enumerate(keep):
            a(f"buffer_load_dwordx2 v[{XR+2*u}:{XR+2*u+1}], v19, {WS}, s{sH2} offen offset:{512*dt} sc1" if dt<8 else
              f"s_add_u32 s{sT0}, s{sH2}, 4096\nbuffer_load_dwordx2 v[{XR+2*u}:{XR+2*u+1}], v19, {WS}, s{sT0} offen sc1")
            a(f"buffer_load_dwordx4 v[{GB+4*u}:{GB+4*u+3}], v20, {WS}, s{sH2+1} offen offset:{64*dt}")
        i=0
        for dt in send:
            for sl in range(4):
                r=ACC2[dt*4+sl]; a(f"ds_write_b128 v16, v[{r}:{r+3}] offset:{woff+1024*i}"); i+=1
        a("s_waitcnt lgkmcnt(0)")
        a("s_barrier")
        spare=[ACC2[dt*4+sl] for dt in send for sl in range(4)]+[128,132,136,140]
        order=[(u,sl) for sl in (1,2,3,0) for u in range(nk)]
        for n,(u,sl) in enumerate(order):
            r=spare[n]; a(f"ds_read_b128 v[{r}:{r+3}], v16 offset:{roff+1024*(u*4+sl)}")
        a(f"s_and_b32 s{sQO+1}, s{sQO+1}, 0xffff")
        PK=32
        for n,(u,sl) in enumerate(order):
            r=spare[n]; k=ACC2[keep[u]*4+sl]
            a(f"s_waitcnt lgkmcnt({min(15,len(order)-1-n)})")
            a(f"v_pk_add_f32 v[{k}:{k+1}], v[{k}:{k+1}], v[{r}:{r+1}]")
            a(f"v_pk_add_f32 v[{k+2}:{k+3}], v[{k+2}:{k+3}], v[{r+2}:{r+3}]")
            if sl:
                p=PK+(sl-1)*10+2*u
                a(f"v_cvt_pk_bf16_f32 v{p}, v{k}, v{k+1}")
                a(f"v_cvt_pk_bf16_f32 v{p+1}, v{k+2}, v{k+3}")
                if u==nk-1:
                    p=PK+(sl-1)*10
                    a(f"s_add_u32 s{sT0}, s{sH2+3}, {(sl-1)*3072}")
                    a(f"buffer_store_dwordx4 v[{p}:{p+3}], v{VL}, {WS}, s{sT0} offen sc1")
                    a(f"buffer_store_dwordx4 v[{p+4}:{p+7}], v{VL}, {WS}, s{sT0} offen offset:1024 sc1")
                    if nk==5: a(f"buffer_store_dwordx2 v[{p+8}:{p+9}], v23, {WS}, s{sT0} offen offset:2048 sc1")
        stamp('pst')
        a("s_waitcnt vmcnt(0)")
        stamp('pdr')
        for x in flagstore(F5,"1"): a(x)
        lb=a.newlabel(f"{name}_p5")
        a(f"s_mov_b32 s{sT1}, {F5}")
        a(f"s_mov_b32 s{sSP}, 0")
        a.label(lb)
        a(f"buffer_load_dword v{VP}, v{VPA}, {WS}, s{sT1} offen sc1")
        a(f"s_add_u32 s{sSP}, s{sSP}, 1")
        a("s_waitcnt vmcnt(0)")
        a(f"v_cmp_gt_u32 vcc, 1, v{VP}")
        a(f"s_cmp_ge_u32 s{sSP}, {SPIN}")
        a(f"s_cbranch_scc1 {lb}x")
        a("s_nop 2")
        a(f"s_cbranch_vccnz {lb}")
        a.label(lb+"x")
        stamp('f5')
        for s in range(1,4):
            p=PK+(s-1)*10
            a(f"buffer_load_dwordx4 v[{p}:{p+3}], v{VL}, {WS}, s{sHS+s} offen sc1")
            a(f"buffer_load_dwordx4 v[{p+4}:{p+7}], v{VL}, {WS}, s{sHS+s} offen offset:1024 sc1")
            if nk==5: a(f"buffer_load_dwordx2 v[{p+8}:{p+9}], v23, {WS}, s{sHS+s} offen offset:2048 sc1")
        a(f"s_mov_b32 s{sT2}, 0xffff0000")
        per=3 if nk==5 else 2
        XF=128
        tmp=[spare[n] for n in range(8)]
        for s in range(1,4):
            a(f"s_waitcnt vmcnt({per*(3-s)})")
            for u in range(nk):
                k=ACC2[keep[u]*4]; p=PK+(s-1)*10+2*u; t=tmp[u]
                a(f"v_lshlrev_b32 v{t}, 16, v{p}"); a(f"v_and_b32 v{t+1}, s{sT2}, v{p}")
                a(f"v_lshlrev_b32 v{t+2}, 16, v{p+1}"); a(f"v_and_b32 v{t+3}, s{sT2}, v{p+1}")
                a(f"v_pk_add_f32 v[{k}:{k+1}], v[{k}:{k+1}], v[{t}:{t+1}]")
                a(f"v_pk_add_f32 v[{k+2}:{k+3}], v[{k+2}:{k+3}], v[{t+2}:{t+3}]")
        for u,dt in enumerate(keep):
            k=ACC2[dt*4]; t=tmp[u]; x=XR+2*u; gb=GB+4*u
            a(f"v_lshlrev_b32 v{t}, 16, v{x}"); a(f"v_and_b32 v{t+1}, s{sT2}, v{x}")
            a(f"v_lshlrev_b32 v{t+2}, 16, v{x+1}"); a(f"v_and_b32 v{t+3}, s{sT2}, v{x+1}")
            a(f"v_pk_fma_f32 v[{t}:{t+1}], v[{k}:{k+1}], v[{gb}:{gb+1}], v[{t}:{t+1}]")
            a(f"v_pk_fma_f32 v[{t+2}:{t+3}], v[{k+2}:{k+3}], v[{gb+2}:{gb+3}], v[{t+2}:{t+3}]")
            a(f"v_cvt_pk_bf16_f32 v{t}, v{t}, v{t+1}")
            a(f"v_cvt_pk_bf16_f32 v{t+1}, v{t+2}, v{t+3}")
            a(f"buffer_store_dwordx2 v[{t}:{t+1}], v21, s[{sQO}:{sQO+3}], s{sH2+2} offen offset:{32*dt}")
        a.stamp_flush(len(SP), 16)
        a("s_endpgm")
    a("v_lshlrev_b32 v23, 3, v38")
    fin([5,6,7,8],[0,1,2,3,4],16384,0)
    a.label(f"{name}_kh0")
    a("v_lshlrev_b32 v23, 3, v38")
    fin([0,1,2,3,4],[5,6,7,8],0,16384)
    poll_slow(a,f"{name}_sl3",3,f"s{sT0}",f"{name}_sl3b")
    poll_slow(a,f"{name}_sl4",4,f"s{sT0}",f"{name}_sl4b")
    poll_slow(a,f"{name}_sl5",5,f"s{sT0}",f"{name}_sl5b")
    a.label(f"{name}_end")
    a("s_endpgm")
    return kernel_desc(name, 512, 256, 70)
```

```python
TSZ=2359296
XT=0x000000; YO=0x240000; MODF=0x480000; FLG=0x490000; H2=0x4C0000; X1=0x700000; HH=0x940000; PART=0x1B40000
HHSZ=128*144*1024
WSEND=PART+1024*9216
FSTR=32
F3=FLG; F4=FLG+1024*FSTR; F5=FLG+2*1024*FSTR; FLGSZ=3*1024*FSTR
SLAB=36864
```

```python
class Op:
    __slots__=("txt","kind","deps","gap","alloc","free","fmt","earliest")
    def __init__(self, fmt, kind, deps=(), alloc=False, free=False, earliest=0):
        self.fmt=fmt; self.kind=kind; self.deps=list(deps); self.gap=None; self.alloc=alloc; self.free=free; self.earliest=earliest
LAT={"V":1,"T":2,"D":1}
def schedule(a, mfmas, reads, scalars, vms, chains, temps, allow_vv_from=None, allow_rt=False, vm_patience=6):
    N=len(mfmas)
    pend=[op for ch in chains for op in ch]
    owner={}
    for ch in chains:
        for op in ch: owner[id(op)]=ch
    treg={}
    temps=list(temps)
    vms=list(vms); lastvm=[-10]
    stats={"vv":0,"over":0,"empty":0}
    def ready(op,g):
        if op.earliest>g: return False
        for d in op.deps:
            if d.gap is None or d.gap+LAT[d.kind]>g: return False
        if op.alloc and not temps: return False
        return True
    def issue(op,g):
        ch=owner[id(op)]
        if op.alloc: treg[id(ch)]=temps.pop(0)
        a(op.fmt.format(T=treg.get(id(ch),"?")))
        if op.free: temps.append(treg.pop(id(ch)))
        op.gap=g; pend.remove(op)
    def pick(kinds,g):
        for op in pend:
            if op.kind in kinds and ready(op,g): return op
        return None
    def remaining_cost():
        return sum(2 if o.kind=="T" else 1 for o in pend)
    for g in range(N):
        a(mfmas[g])
        sc=list(scalars.get(g,[]))
        slots=2
        vm=None
        isread = g in reads
        if vms and vms[0][0] and not sc and vms[0][2]<=g+2:
            sc.append(vms[0][0]); vms[0]=(None,vms[0][1],max(vms[0][2],g+1))
        elif not isread and vms and vms[0][2]<=g and not vms[0][0]:
            t=pick("T",g)
            late = (g-vms[0][2] >= vm_patience) and (g-lastvm[0]>=4)
            if t is None or late: vm=vms.pop(0); lastvm[0]=g
        for s in sc: a(s)
        if isread: a(reads[g]); slots-=1
        if vm: a(vm[1]); slots-=1
        if slots==2:
            op=pick("T",g)
            if op: issue(op,g); continue
            op=pick("D",g)
            if op: issue(op,g); slots-=1
        op=pick("V",g)
        if op is None and allow_rt:
            op=pick("T",g)
            if op: stats["over"]+=1
        if op:
            issue(op,g); slots-=1
            if slots==1 and allow_vv_from is not None and g>=allow_vv_from:
                op=pick("V",g)
                if op: issue(op,g); stats["vv"]+=1
        elif slots==2: stats["empty"]+=1
    stats["lastop"]=max([o.gap for ch in chains for o in ch if o.gap is not None] or [0])
    left=list(pend)
    g=N+10
    while pend:
        op=None
        for o in pend:
            if ready(o,g): op=o; break
        assert op is not None
        issue(op,g); g+=3
    for v in vms:
        if v[0]: a(v[0]); a("s_nop 0")
        a(v[1])
    stats["left"]=len(left)+len(vms)
    return stats
```

```python
import sys
from asmlib import *
from gen import build
import k01, kp as kf
k01.OPT['sent']=1
ALL=[(k01.k0,"k0_kernel",288,256,0),(kf.kf,"kf_kernel",256,256,kf.KF_LDS)]
if __name__=="__main__":
    build(ALL, "f3.s", verbose=len(sys.argv)>1)
    A.STAMP=True
    build(ALL, "f3_st.s")
    kf.OPT['sp']=['loop','last','g2','g2end','pst','pdr','f5']
    build(ALL, "f3_x0.s")
    import json
    V=json.loads(open("variants.json").read())
    for i,o in enumerate(V):
        sv=(dict(kf.OPT),dict(k01.OPT))
        for k,v in o.items():
            if k.startswith("k_"): k01.OPT[k[2:]]=v
            else: kf.OPT[k]=v
        A.STAMP=not o.get("nost")
        build(ALL, f"f3_x{i+1}.s")
        kf.OPT.clear(); kf.OPT.update(sv[0]); k01.OPT.clear(); k01.OPT.update(sv[1])
```

```python
KN = "adaLN_cond__ssm_conv_h3__glu_gated_geglu__prompt_kernel"
KA = dict(q=0,k=8,v=16,shift=24,ssmk=32,ssmD=40,bx=48,wg=56,wu=64,wd=72,c=80,wmod=88,out=96,dbg=104,ws=112)
SZ = dict(q=2359296,k=2359296,v=2359296,shift=4608,ssmk=2359296,ssmD=1152,bx=2359296,wg=5308416,wu=5308416,wd=5308416,c=1152,wmod=3981312,out=2359296,dbg=256,ws=268435456)

class A:
    def __init__(self):
        self.l = []
        self.uid = 0
    def __call__(self, s=""):
        for line in s.split("\n"):
            self.l.append("    " + line.strip() if line.strip() and not line.strip().endswith(":") else line.strip())
    def label(self, name):
        self.l.append(name + ":")
    def newlabel(self, p="L"):
        self.uid += 1
        return f"{p}_{A.kidx}_{self.uid}"
    def text(self):
        return "\n".join(self.l) + "\n"
    STAMP=False
    DBG=None
    kidx=0
    def stamp(self, i, wait=False):
        if not A.STAMP: return
        self(f"s_memrealtime s[{70+4*i}:{71+4*i}]")
        self(f"s_memtime s[{72+4*i}:{73+4*i}]")
        if wait: self("s_waitcnt lgkmcnt(0)")
    def stamp_flush(self, last, v=1):
        if not A.STAMP: return
        self("s_waitcnt vmcnt(0)")
        self.stamp(last)
        self(f"s_load_dwordx2 s[4:5], s[0:1], {KA['ws']}")
        self("s_waitcnt lgkmcnt(0)")
        self("s_mov_b64 exec, -1")
        self(f"s_add_u32 s4, s4, {0x8000000 + A.kidx*0x100000}")
        self("s_addc_u32 s5, s5, 0")
        self("s_and_b32 s5, s5, 0xffff")
        self("s_mov_b32 s6, 0x100000")
        self("s_mov_b32 s7, 0x00020000")
        self(f"v_mov_b32 v{v}, 0")
        for j in range(2*(last+1)): self(f"v_writelane_b32 v{v}, s{70+2*j}, {j}")
        self(f"v_lshlrev_b32 v{v+1}, 2, v0")
        self("s_mul_i32 s3, s2, 2304")
        self(f"buffer_store_dword v{v}, v{v+1}, s[4:7], s3 offen")
        if A.DBG is not None:
            lb=self.newlabel("dbgskip")
            self(f"s_cmp_lg_u32 s2, {A.DBG}")
            self(f"s_cbranch_scc1 {lb}")
            self(f"s_load_dwordx2 s[4:5], s[0:1], {KA['dbg']}")
            self("s_waitcnt lgkmcnt(0)")
            self("s_and_b32 s5, s5, 0xffff")
            self("s_mov_b32 s6, 64")
            self(f"buffer_store_dword v{v}, v{v+1}, s[4:7], 0 offen")
            self.label(lb)
    def srd(self, s, base, size):
        self(f"s_mov_b32 s{s}, s{base}")
        self(f"s_and_b32 s{s+1}, s{base+1}, 0xffff")
        self(f"s_mov_b32 s{s+2}, {size}")
        self(f"s_mov_b32 s{s+3}, 0x00020000")

def kernel_begin(a, name):
    a.l.append(f".globl {name}")
    a.l.append(".p2align 8")
    a.l.append(f".type {name},@function")
    a.l.append(f"{name}:")

def kernel_desc(name, vgpr, accum, sgpr=102, wgy=False):
    if A.STAMP: sgpr=102
    s = f""".amdhsa_kernel {name}
  .amdhsa_next_free_vgpr {vgpr}
  .amdhsa_next_free_sgpr {sgpr}
  .amdhsa_accum_offset {accum}
  .amdhsa_group_segment_fixed_size 0
  .amdhsa_kernarg_size 120
  .amdhsa_user_sgpr_count 2
  .amdhsa_user_sgpr_kernarg_segment_ptr 1
  .amdhsa_system_sgpr_workgroup_id_x 1
"""
    if wgy: s += "  .amdhsa_system_sgpr_workgroup_id_y 1\n"
    s += "  .amdhsa_float_denorm_mode_32 3\n"
    s += ".end_amdhsa_kernel\n"
    return s

def finish(header_lines, body, descs):
    s = "".join(f"; {h}\n" for h in header_lines)
    s += '.amdgcn_target "amdgcn-amd-amdhsa--gfx950"\n.text\n'
    s += body
    s += '.section .rodata,"a"\n'
    for d in descs:
        s += ".p2align 6\n" + d
    return s
```

```python
KN = "adaLN_cond__ssm_conv_h3__glu_gated_geglu__prompt_kernel"
KA = dict(q=0,k=8,v=16,shift=24,ssmk=32,ssmD=40,bx=48,wg=56,wu=64,wd=72,c=80,wmod=88,out=96,dbg=104,ws=112)
SZ = dict(q=2359296,k=2359296,v=2359296,shift=4608,ssmk=2359296,ssmD=1152,bx=2359296,wg=5308416,wu=5308416,wd=5308416,c=1152,wmod=3981312,out=2359296,dbg=256,ws=268435456)

class A:
    def __init__(self):
        self.l = []
        self.uid = 0
    def __call__(self, s=""):
        for line in s.split("\n"):
            self.l.append("    " + line.strip() if line.strip() and not line.strip().endswith(":") else line.strip())
    def label(self, name):
        self.l.append(name + ":")
    def newlabel(self, p="L"):
        self.uid += 1
        return f"{p}_{A.kidx}_{self.uid}"
    def text(self):
        return "\n".join(self.l) + "\n"
    STAMP=False
    DBG=None
    kidx=0
    def stamp(self, i, wait=False):
        if not A.STAMP: return
        self(f"s_memrealtime s[{70+4*i}:{71+4*i}]")
        self(f"s_memtime s[{72+4*i}:{73+4*i}]")
        if wait: self("s_waitcnt lgkmcnt(0)")
    def stamp_flush(self, last, v=1):
        if not A.STAMP: return
        self("s_waitcnt vmcnt(0)")
        self.stamp(last)
        self(f"s_load_dwordx2 s[4:5], s[0:1], {KA['ws']}")
        self("s_waitcnt lgkmcnt(0)")
        self("s_mov_b64 exec, -1")
        self(f"s_add_u32 s4, s4, {0x8000000 + A.kidx*0x200000}")
        self("s_addc_u32 s5, s5, 0")
        self("s_and_b32 s5, s5, 0xffff")
        self("s_mov_b32 s6, 0x200000")
        self("s_mov_b32 s7, 0x00020000")
        self(f"v_mov_b32 v{v}, 0")
        for j in range(2*(last+1)): self(f"v_writelane_b32 v{v}, s{70+2*j}, {j}")
        self(f"v_lshlrev_b32 v{v+1}, 2, v0")
        self("s_mul_i32 s3, s2, 2304")
        self(f"buffer_store_dword v{v}, v{v+1}, s[4:7], s3 offen")
        if A.DBG is not None and A.kidx>0:
            lb=self.newlabel("dbgskip")
            self(f"s_cmp_lg_u32 s2, {A.DBG}")
            self(f"s_cbranch_scc1 {lb}")
            self(f"s_sub_u32 s4, s4, {A.kidx*0x200000}")
            self("s_subb_u32 s5, s5, 0")
            self(f"v_mov_b32 v{v}, 0")
            for j in range(last+1): self(f"v_writelane_b32 v{v}, s{70+4*j}, {j}")
            self(f"v_and_b32 v{v+2}, 3, v0"); self(f"v_min_u32 v{v+3}, 1, v{v+2}"); self(f"v_add_u32 v{v+2}, v{v+2}, v{v+3}"); self(f"v_lshlrev_b32 v{v+2}, 3, v{v+2}")
            self(f"v_bfe_u32 v{v+3}, v0, 2, 1"); self(f"v_mul_u32_u24 v{v+3}, {279*2304}, v{v+3}"); self(f"v_add_u32 v{v+2}, v{v+2}, v{v+3}")
            self(f"v_add_u32 v{v+2}, {8*2304}, v{v+2}")
            self(f"buffer_load_dword v{v+3}, v{v+2}, s[4:7], 0 offen")
            self(f"s_load_dwordx2 s[4:5], s[0:1], {KA['dbg']}")
            self("s_waitcnt vmcnt(0) lgkmcnt(0)")
            self("v_cmp_gt_u32 vcc, 8, v0")
            self(f"v_cndmask_b32 v{v}, v{v+3}, v{v}, vcc")
            self("s_and_b32 s5, s5, 0xffff")
            self("s_mov_b32 s6, 64")
            self(f"buffer_store_dword v{v}, v{v+1}, s[4:7], 0 offen")
            self.label(lb)
    def srd(self, s, base, size):
        self(f"s_mov_b32 s{s}, s{base}")
        self(f"s_and_b32 s{s+1}, s{base+1}, 0xffff")
        self(f"s_mov_b32 s{s+2}, {size}")
        self(f"s_mov_b32 s{s+3}, 0x00020000")

def kernel_begin(a, name):
    a.l.append(f".globl {name}")
    a.l.append(".p2align 8")
    a.l.append(f".type {name},@function")
    a.l.append(f"{name}:")

def kernel_desc(name, vgpr, accum, sgpr=102, wgy=False):
    if A.STAMP: sgpr=102
    s = f""".amdhsa_kernel {name}
  .amdhsa_next_free_vgpr {vgpr}
  .amdhsa_next_free_sgpr {sgpr}
  .amdhsa_accum_offset {accum}
  .amdhsa_group_segment_fixed_size 0
  .amdhsa_kernarg_size 120
  .amdhsa_user_sgpr_count 2
  .amdhsa_user_sgpr_kernarg_segment_ptr 1
  .amdhsa_system_sgpr_workgroup_id_x 1
"""
    if wgy: s += "  .amdhsa_system_sgpr_workgroup_id_y 1\n"
    s += "  .amdhsa_float_denorm_mode_32 3\n"
    s += ".end_amdhsa_kernel\n"
    return s

def finish(header_lines, body, descs):
    s = "".join(f"; {h}\n" for h in header_lines)
    s += '.amdgcn_target "amdgcn-amd-amdhsa--gfx950"\n.text\n'
    s += body
    s += '.section .rodata,"a"\n'
    for d in descs:
        s += ".p2align 6\n" + d
    return s
```

```python
TSZ=2359296
XT=0x000000; YO=0x240000; MODF=0x480000; STAT=0x484000; FLG=0x490000; H2=0x4C0000; X1=0x700000; HH=0x940000; PART=0x1B40000
HHSZ=128*144*1024
WDP=PART+1024*9216
WSEND=WDP+5308416
FSTR=32
F3=FLG; F4=FLG+1024*FSTR; F5=FLG+2*1024*FSTR; F6=FLG+3*1024*FSTR; FLGSZ=4*1024*FSTR
SLAB=36864
```

```python
class Op:
    __slots__=("txt","kind","deps","gap","alloc","free","fmt","earliest")
    def __init__(self, fmt, kind, deps=(), alloc=False, free=False, earliest=0):
        self.fmt=fmt; self.kind=kind; self.deps=list(deps); self.gap=None; self.alloc=alloc; self.free=free; self.earliest=earliest
LAT={"V":1,"T":2,"D":1}
def schedule(a, mfmas, reads, scalars, vms, chains, temps, allow_vv_from=None, allow_rt=False, vm_patience=6):
    N=len(mfmas)
    pend=[op for ch in chains for op in ch]
    owner={}
    for ch in chains:
        for op in ch: owner[id(op)]=ch
    treg={}
    temps=list(temps)
    vms=list(vms); lastvm=[-10]
    stats={"vv":0,"over":0,"empty":0}
    def ready(op,g):
        if op.earliest>g: return False
        for d in op.deps:
            if d.gap is None or d.gap+LAT[d.kind]>g: return False
        if op.alloc and not temps: return False
        return True
    def issue(op,g):
        ch=owner[id(op)]
        if op.alloc: treg[id(ch)]=temps.pop(0)
        a(op.fmt.format(T=treg.get(id(ch),"?")))
        if op.free: temps.append(treg.pop(id(ch)))
        op.gap=g; pend.remove(op)
    def pick(kinds,g):
        for op in pend:
            if op.kind in kinds and ready(op,g): return op
        return None
    def remaining_cost():
        return sum(2 if o.kind=="T" else 1 for o in pend)
    for g in range(N):
        a(mfmas[g])
        sc=list(scalars.get(g,[]))
        slots=2
        vm=None
        isread = g in reads
        if vms and vms[0][0] and not sc and vms[0][2]<=g+2:
            sc.append(vms[0][0]); vms[0]=(None,vms[0][1],max(vms[0][2],g+1))
        elif not isread and vms and vms[0][2]<=g and not vms[0][0]:
            t=pick("T",g)
            late = (g-vms[0][2] >= vm_patience) and (g-lastvm[0]>=4)
            if t is None or late: vm=vms.pop(0); lastvm[0]=g
        for s in sc: a(s)
        if isread: a(reads[g]); slots-=1
        if vm: a(vm[1]); slots-=1
        if slots==2:
            op=pick("T",g)
            if op: issue(op,g); continue
            op=pick("D",g)
            if op: issue(op,g); slots-=1
        op=pick("V",g)
        if op is None and allow_rt:
            op=pick("T",g)
            if op: stats["over"]+=1
        if op:
            issue(op,g); slots-=1
            if slots==1 and allow_vv_from is not None and g>=allow_vv_from:
                op=pick("V",g)
                if op: issue(op,g); stats["vv"]+=1
        elif slots==2: stats["empty"]+=1
    stats["lastop"]=max([o.gap for ch in chains for o in ch if o.gap is not None] or [0])
    left=list(pend)
    g=N+10
    while pend:
        op=None
        for o in pend:
            if ready(o,g): op=o; break
        assert op is not None
        issue(op,g); g+=3
    for v in vms:
        if v[0]: a(v[0]); a("s_nop 0")
        a(v[1])
    stats["left"]=len(left)+len(vms)
    return stats


def kind_of(txt):
    t=txt.strip().split()[0]
    if t.startswith("@"): return "S"
    if t.endswith(":"): return "S"
    if t.startswith("s_"): return "S"
    if t.startswith(("buffer_","ds_","global_")): return "M"
    if t.startswith(("v_exp","v_rcp","v_rsq","v_mul_hi","v_mul_lo","v_log","v_sqrt")): return "T"
    return "V"

def schedule_stream(a, mfmas, reads, scalars, stream, start=0, maxv=2, pace=None):
    st=[x if isinstance(x,tuple) else (x,0) for x in stream]
    last=0
    for g,m in enumerate(mfmas):
        a(m)
        sc=list(scalars.get(g,[]))
        for s in sc: a(s)
        ok=lambda: st and g>=start and st[0][1]<=g
        if not sc and ok() and kind_of(st[0][0])=="S": a(st.pop(0)[0]); last=g
        slots=2; usedv=False
        if g in reads: a(reads[g]); slots-=1
        n=0
        while slots>0 and ok() and n<maxv:
            k=kind_of(st[0][0])
            if k=="M" and (usedv or slots<2): break
            if k=="T" and slots<2: break
            a(st.pop(0)[0]); last=g; n+=1
            slots-= 2 if k=="T" else 1
            if k in "VT": usedv=True
    left=len(st)
    for x,_ in st: a(x)
    return {"left":left,"last":last}
```

```python
from gen3 import *
def empty(a,name):
    kernel_begin(a,name); a("s_endpgm"); return kernel_desc(name,8,8,16)
E=(empty,"e_kernel",256,256,0)
kf.OPT.update(d0=200,d1=5)
build(ALL,"var_a.s")
build([E]+ALL,"var_b.s")
build([E,E]+ALL,"var_c.s")
build(ALL+[E],"var_d.s")
build([ALL[0],E,ALL[1]],"var_e.s")
```

```python
KN = "adaLN_cond__ssm_conv_h3__glu_gated_geglu__prompt_kernel"
KA = dict(q=0,k=8,v=16,shift=24,ssmk=32,ssmD=40,bx=48,wg=56,wu=64,wd=72,c=80,wmod=88,out=96,dbg=104,ws=112)
SZ = dict(q=2359296,k=2359296,v=2359296,shift=4608,ssmk=2359296,ssmD=1152,bx=2359296,wg=5308416,wu=5308416,wd=5308416,c=1152,wmod=3981312,out=2359296,dbg=256,ws=268435456)

class A:
    def __init__(self):
        self.l = []
        self.uid = 0
    def __call__(self, s=""):
        for line in s.split("\n"):
            self.l.append("    " + line.strip() if line.strip() and not line.strip().endswith(":") else line.strip())
    def label(self, name):
        self.l.append(name + ":")
    def newlabel(self, p="L"):
        self.uid += 1
        return f"{p}_{A.kidx}_{self.uid}"
    def text(self):
        return "\n".join(self.l) + "\n"
    STAMP=False
    DBG=None
    kidx=0
    CYC=False
    def stamp_txt(self, i):
        return f"{'s_memtime' if A.CYC else 's_memrealtime'} s[{86+2*i}:{87+2*i}]"
    def stamp(self, i, wait=False):
        if not A.STAMP: return
        self(self.stamp_txt(i))
        if wait: self("s_waitcnt lgkmcnt(0)")
    def stamp_flush(self, last, v=1):
        if not A.STAMP: return
        self("s_waitcnt vmcnt(0)")
        self.stamp(last)
        self(f"s_load_dwordx2 s[4:5], s[0:1], {KA['ws']}")
        self("s_waitcnt lgkmcnt(0)")
        self("s_mov_b64 exec, -1")
        self(f"s_add_u32 s4, s4, {0x8000000 + A.kidx*0x200000}")
        self("s_addc_u32 s5, s5, 0")
        self("s_and_b32 s5, s5, 0xffff")
        self("s_mov_b32 s6, 0x200000")
        self("s_mov_b32 s7, 0x00020000")
        self(f"v_mov_b32 v{v}, 0")
        for j in range(last+1): self(f"v_writelane_b32 v{v}, s{86+2*j}, {j}")
        self(f"v_lshlrev_b32 v{v+1}, 2, v0")
        self("s_mul_i32 s3, s2, 2304")
        self(f"buffer_store_dword v{v}, v{v+1}, s[4:7], s3 offen sc1")
    def srd(self, s, base, size):
        self(f"s_mov_b32 s{s}, s{base}")
        self(f"s_and_b32 s{s+1}, s{base+1}, 0xffff")
        self(f"s_mov_b32 s{s+2}, {size}")
        self(f"s_mov_b32 s{s+3}, 0x00020000")

def kernel_begin(a, name):
    a.l.append(f".globl {name}")
    a.l.append(".p2align 8")
    a.l.append(f".type {name},@function")
    a.l.append(f"{name}:")

def kernel_desc(name, vgpr, accum, sgpr=102, wgy=False):
    if A.STAMP: sgpr=102
    s = f""".amdhsa_kernel {name}
  .amdhsa_next_free_vgpr {vgpr}
  .amdhsa_next_free_sgpr {sgpr}
  .amdhsa_accum_offset {accum}
  .amdhsa_group_segment_fixed_size 0
  .amdhsa_kernarg_size 120
  .amdhsa_user_sgpr_count 2
  .amdhsa_user_sgpr_kernarg_segment_ptr 1
  .amdhsa_system_sgpr_workgroup_id_x 1
"""
    if wgy: s += "  .amdhsa_system_sgpr_workgroup_id_y 1\n"
    s += "  .amdhsa_float_denorm_mode_32 3\n"
    s += ".end_amdhsa_kernel\n"
    return s

def finish(header_lines, body, descs):
    s = "".join(f"; {h}\n" for h in header_lines)
    s += '.amdgcn_target "amdgcn-amd-amdhsa--gfx950"\n.text\n'
    s += body
    s += '.section .rodata,"a"\n'
    for d in descs:
        s += ".p2align 6\n" + d
    return s
```

```python
import re
TRANS = ("v_exp_f32","v_log_f32","v_rcp_f32","v_rsq_f32","v_sqrt_f32","v_sin_f32","v_cos_f32","v_rcp_iflag_f32")
def regs(tok):
    tok = tok.strip()
    tok = tok.lstrip("-")
    m = re.fullmatch(r"(?:abs\()?\|?([vas])(\d+)\|?\)?", tok)
    if m: return {(m.group(1), int(m.group(2)))}
    m = re.fullmatch(r"([vas])\[(\d+):(\d+)\]", tok)
    if m: return {(m.group(1), i) for i in range(int(m.group(2)), int(m.group(3))+1)}
    if tok == "vcc": return {("s","vcc")}
    if tok in ("vcc_lo","vcc_hi"): return {("s","vcc")}
    if tok == "m0": return {("s","m0")}
    if tok in ("exec","exec_lo","exec_hi"): return {("s","exec")}
    return set()
class I:
    pass
def parse(line):
    s = line.split(";")[0].strip()
    if not s or s.endswith(":") or s.startswith("."): return None
    parts = s.split(None, 1)
    op = parts[0]
    rest = parts[1] if len(parts) > 1 else ""
    ops = [x.strip() for x in re.split(r",(?![^\[]*\])", rest)] if rest else []
    mods = ""
    if ops:
        l = ops[-1].split(None, 1)
        ops[-1] = l[0]
        if len(l) > 1: mods = l[1]
    i = I(); i.op = op; i.ops = ops; i.mods = mods; i.line = line
    i.W = set(); i.R = set(); i.cls = "other"; i.C = set(); i.AB = set(); i.data=set(); i.n=1
    R = [regs(o) for o in ops]
    if op == "s_nop": i.n = int(ops[0], 0) + 1
    elif op.startswith("v_mfma"):
        i.cls = "mfma"; i.W = R[0]; i.AB = R[1] | R[2]; i.C = R[3]; i.R = i.AB | i.C
        i.passes = 8 if "32x32" in op else 4
    elif op.startswith("v_"):
        i.cls = "valu"
        base = re.sub(r"_e(32|64)$|_dpp$|_sdwa$", "", op)
        i.trans = base in TRANS
        i.dpp = ("row_" in mods or "quad_perm" in mods or "wave_" in mods or "_dpp" in op)
        i.opsel = ("op_sel" in mods and not base.startswith("v_pk_")) or "dst_sel" in mods
        nd = 1
        if base.startswith(("v_add_co","v_sub_co","v_addc_co","v_subb_co","v_subrev_co","v_div_scale","v_mad_u64","v_mad_i64")): nd = 2
        for k in range(nd): i.W |= R[k]
        for k in range(nd, len(R)): i.R |= R[k]
        if base.startswith(("v_fmac","v_mac","v_pk_fmac","v_dot2c","v_writelane","v_fmaak","v_fmamk")) or i.dpp or "dst_unused:UNUSED_PRESERVE" in mods: i.R |= R[0]
        if base.startswith("v_permlane") and "swap" in base: i.W |= R[1]; i.R |= R[0]
        if base.startswith("v_swap"): i.W |= R[1]; i.R |= R[0]
        i.perm = base.startswith("v_permlane")
        i.rdlane = base.startswith(("v_readlane","v_readfirstlane"))
        i.lanesel = regs(ops[2]) if base.startswith(("v_readlane","v_writelane")) else set()
        if base.startswith("v_cmpx"): i.W |= {("s","exec")}
    elif op.startswith(("buffer_","global_")):
        i.cls = "vmem"
        lds = "lds" in mods.split() or "_lds_" in op
        i.lds = lds
        if "load" in op and not lds:
            i.W = R[0]
            for r in R[1:]: i.R |= r
        elif "atomic" in op:
            for r in R: i.R |= r
            if "sc0" in mods.split(): i.W = R[0]
        else:
            for r in R: i.R |= r
            if "store" in op:
                d = R[0] if op.startswith("buffer_") else R[1]
                i.data = d if ("x3" in op or "x4" in op) else set()
        if lds: i.R |= {("s","m0")}
    elif op.startswith("ds_"):
        i.cls = "ds"
        if op.startswith(("ds_read","ds_bpermute","ds_permute","ds_swizzle")) or "_rtn" in op:
            i.W = R[0]
            for r in R[1:]: i.R |= r
        else:
            for r in R: i.R |= r
    elif op.startswith("s_"):
        i.cls = "salu"
        if op.startswith(("s_waitcnt","s_barrier","s_branch","s_cbranch","s_endpgm","s_setprio","s_sleep")): i.cls = "other"
        elif op.startswith("s_cmp") or op.startswith("s_bitcmp"):
            for r in R: i.R |= r
        else:
            i.W = R[0] if R else set()
            for r in R[1:]: i.R |= r
            if "saveexec" in op: i.W |= {("s","exec")}
    return i
def isv(s): return {x for x in s if x[0] in "va"}
def iss(s): return {x for x in s if x[0] == "s"}
def need(p, c):
    n = 0
    if p.cls == "valu":
        pv = isv(p.W); ps = iss(p.W)
        if c.cls == "mfma" and pv & c.R: n = max(n, 2)
        if c.cls == "valu":
            if p.trans and not c.trans and pv & c.R: n = max(n, 1)
            if p.trans and c.trans and pv & c.R: n = max(n, 1)
            if p.opsel and pv & (c.R | c.W): n = max(n, 1)
            if c.rdlane and pv & c.R: n = max(n, 1)
            if (c.dpp or c.perm) and pv & c.R: n = max(n, 2)
            if ps & c.lanesel: n = max(n, 4)
            if ps & c.R: n = max(n, 2)
            if ("s","exec") in ps: n = max(n, 5)
        if c.cls == "vmem" and ps & c.R: n = max(n, 5)
        if c.cls == "mfma" and ("s","exec") in ps: n = max(n, 4)
        if c.cls == "salu" and ps & c.R: n = max(n, 1)
    if p.cls == "mfma":
        a = p.passes
        if c.cls == "mfma":
            if p.W & c.AB: n = max(n, a + 4)
            if p.W & c.C and not (p.W == c.C and c.passes == a): n = max(n, a + 2)
            if p.W & c.W and not (p.W == c.C and c.passes == a): n = max(n, a + 2)
        elif c.cls in ("valu",):
            if p.W & (c.R | c.W): n = max(n, a + 4)
            if p.C & c.W: n = max(n, a - 1)
        elif c.cls in ("vmem","ds"):
            if p.W & (c.R | c.W): n = max(n, a + 4)
            if p.C & c.W: n = max(n, a - 1)
    if p.cls == "vmem" and p.data:
        if c.cls == "valu" and p.data & c.W: n = max(n, 2)
        elif p.data & c.W: n = max(n, 1)
    if p.cls == "salu" and ("s","m0") in p.W and (c.cls == "vmem" and getattr(c,"lds",False) or (c.cls=="valu" and ("s","m0") in c.R)): n = max(n, 1)
    return n
def fix(lines, verbose=None):
    out = []; hists = [[]]; nins = 0
    labels = {}
    pend = {}
    for idx, line in enumerate(lines):
        s = line.strip()
        if s.endswith(":"): labels[s[:-1]] = idx
    def req(hist, i, d0=0):
        dist = d0; pad = 0; who=None
        for p in reversed(hist):
            n = need(p, i)
            if n - dist > pad: pad = n - dist; who=p
            dist += p.n
            if dist >= 20: break
        return pad, who
    for idx, line in enumerate(lines):
        s = line.strip()
        if s.endswith(":") and s[:-1] in pend:
            hists += pend.pop(s[:-1])
        i = parse(line)
        if i is None:
            out.append(line); continue
        pad = max(req(h, i)[0] for h in hists) if hists else 0
        if pad:
            nop = parse(f"s_nop {pad-1}")
            out.append(f"    s_nop {pad-1} ; hz"); nins += 1
            for h in hists: h.append(nop)
            if verbose is not None: verbose.append((idx, pad, line.strip()))
        out.append(line)
        for h in hists: h.append(i)
        if i.op.startswith(("s_cbranch","s_branch")) and i.ops and i.ops[0] in labels:
            if labels[i.ops[0]] < idx:
                j = labels[i.ops[0]]; d = 0
                while d < 20 and j < idx:
                    h0 = parse(lines[j]); j += 1
                    if h0 is None: continue
                    for h in hists:
                        pad, who = req(h, h0, d)
                        if pad: raise Exception(f"loop back-edge hazard: {who.line.strip()} -> {h0.line.strip()} short by {pad}")
                    d += h0.n
            else:
                pend.setdefault(i.ops[0], []).extend([list(h[-24:]) for h in hists])
        if i.op in ("s_branch","s_endpgm"): hists = [[]]
        hists = [h[-24:] for h in hists]
        uniq = {}
        for h in hists: uniq[tuple(id(x) for x in h)] = h
        hists = list(uniq.values())
    return out, nins


SCCW=("s_add_","s_sub_","s_addc","s_subb","s_and_","s_or_","s_xor_","s_lshl_","s_lshr_","s_ashr","s_min_","s_max_","s_cmp","s_bfe","s_not_","s_andn2","s_bitcmp","s_abs")
def lint(lines):
    scc=None; vcc=None
    for ln in lines:
        t=ln.split(";")[0].strip()
        if not t or t.startswith("."): continue
        if t.endswith(":"): continue
        op=t.split()[0]
        if op.startswith(("s_cselect","s_cbranch_scc")): assert scc and scc.startswith(("s_cmp","s_bitcmp")), ("SCC",scc,t)
        if op.startswith("s_addc"): assert scc and scc.startswith("s_add_u32"), ("SCC",scc,t)
        if op.startswith("s_cbranch_vcc") or (op.startswith("v_cndmask") and t.rstrip().endswith("vcc")): assert vcc and vcc.startswith("v_cmp"), ("VCC",vcc,t)
        if op.startswith(SCCW) : scc=t
        if op.startswith("v_") and re.match(r"\S+\s+(vcc|v\d+, vcc)",t): vcc=t
```

```python
from asmlib import *
from layout import *
from sched import Op, schedule, schedule_stream
import struct, re
def fbits(x): return "0x%08x"%struct.unpack("<I",struct.pack("<f",x))[0]
C0=-2*1.4426950408889634*0.7978845608028654
C1=C0*0.044715
KS_LDS=163840
LST=4*SLAB; LST1=0; MW=2*SLAB; MSI=1024
SPIN=400000
H2_=H2; X1_=X1
OPT=dict()
sWG,sWU,sWD,sWS,sQO=4,8,12,16,20
sW,sE,sJ,sPAR,sKPS,sKPF,sKQ,sKH,sRH,sDS=24,25,26,27,28,29,30,31,32,33
sLW,sC0=34,35
sY=36
sWO=39
sDM=40
sT0,sT1,sT2=3,49,66
sH2=50; sHS=54; sPO=58; sFA=59; sOUT=60; sHL=62
sSB=67; sRT2=68; sSP=69; sTAG=70; sEP=71; sG=72; sRB=73
sX=76
VA=[2,3,4,5,56,57,58,59]
VD0=6; VD=7; VH=8; VL=9; VC1=10; VP=11; VPA=12; VF=13; VA2=14; VPB=60; VPF=62; VJ=1
VDM=[56,57,58,59,61,63,6,7,12]; VDT=150
VOF=24
TEMPS=[16,17,18,19,20,21,22,23,28,29,30,31]
AF=32; ACC=64; HP=128
vN,vCL,vQO,vYO,vHO,vLN=200,201,202,203,204,205
def breg(i):
    i*=4
    return f"a[{i}:{i+3}]" if i<256 else f"v[{224+i-256}:{224+i-256+3}]"
def breg2(i):
    i*=4
    return f"a[{i}:{i+3}]" if i<256 else f"v[{96+i-256}:{96+i-256+3}]"
ACC2=list(range(64,96,4))+list(range(144,256,4))
PORD=[4,0,5,1,6,2,7,3,8]
WS=f"s[{sWS}:{sWS+3}]"
pr=lambda r: f"v[{r}:{r+1}]"

def kf(a, name):
    H2=XT if OPT.get('alh',1) else H2_
    X1=YO if OPT.get('alx',1) else X1_
    SP=OPT.get('sp',[])
    def stamp(n):
        if n in SP: a.stamp(SP.index(n))
    cut=[]
    def view():
        L=a.l
        for lo,hi in reversed(cut): L=L[:lo]+L[hi:]
        return L
    EXP={"b":4,"c":8,"w":9,"d":18}
    def after(pred):
        cnt=0
        for ln in reversed(view()):
            if "buffer_" in ln:
                if pred(ln): return min(cnt,63)
                cnt+=1
        raise Exception("not found")
    def E(txt):
        for t in txt.split("\n"):
            m=re.search(r"@W:(\w+)",t)
            if m:
                tag=m.group(1)
                if tag[0] in EXP and tag[1:2].isdigit() and tag!="d0":
                    n=sum(1 for l in view() if l.rstrip().endswith('; '+tag))
                    assert n==EXP[tag[0]], (tag,n)
                t=t.replace(m.group(0),f"s_waitcnt vmcnt({after(lambda l: l.rstrip().endswith('; '+tag))})")
            a(t)
    def fin_srd(s,sz,o=a):
        o(f"s_and_b32 s{s+1}, s{s+1}, 0xffff"); o(f"s_mov_b32 s{s+2}, {sz}"); o(f"s_mov_b32 s{s+3}, 0x00020000")
    def flagstore(F,val,addr=sSB):
        return [f"s_add_u32 s{sT1}, s{addr}, {F}", f"v_mov_b32 v{VF}, s{sTAG}" if val==0 else f"v_add_u32 v{VF}, {val}, v{VTG}", "s_mov_b64 exec, 1",
                f"buffer_store_dword v{VF}, off, {WS}, s{sT1} sc1", "s_mov_b64 exec, -1"]
    def notready(need,v=VP):
        return [f"v_subrev_u32 v{v}, s{sTAG}, v{v}"]+([f"v_subrev_u32 v{v}, {need}, v{v}"] if need else [])+[f"v_cmp_lt_u32 vcc, {5-need}, v{v}"]
    VTG=199
    def spin(lbl, loads, check, back=None, sleep=0):
        a(f"s_mov_b32 s{sSP}, 0")
        a.label(lbl)
        for x in loads: a(x)
        a(f"s_add_u32 s{sSP}, s{sSP}, 1")
        a("s_waitcnt vmcnt(0)")
        for x in check: a(x)
        a(f"s_cmp_ge_u32 s{sSP}, {SPIN}")
        a(f"s_cbranch_scc1 {lbl}x")
        if sleep:
            a(f"s_cbranch_vccz {lbl}x"); a(f"s_sleep {sleep}"); a(f"s_branch {lbl}")
        else:
            a("s_nop 1"); a(f"s_cbranch_vccnz {lbl}")
        a.label(lbl+"x")
        if back: a(f"s_branch {back}")
    def dma(stage,tag="dma"):
        L=[]
        for sb in range(2):
            srd=(sWG,sWU)[sb]
            for i in range(9):
                pre=f"s_add_u32 m0, s{sLW}, {(stage*2+sb)*SLAB+i*1024}" if i%4==0 else None
                L.append((pre,f"buffer_load_dwordx4 v{VD}, s[{srd}:{srd+3}], s{sDM+i} offen offset:{(i%4)*1024} {OPT.get('dmp','')} lds ; {tag}"))
        return L
    def emit_vm(L):
        for p,x in L:
            if p: a(p); a("s_nop 0")
            a(x)
    slow=[]
    Qr=208; ST=206; Q=132; H=156; MA=64; MB=32; MC=220; Yr=88; Yv=100; S=180; vS0,vS1,vMO=196,197,198
    def reduce3(o):
        for z in range(2): o(f"v_add_f32 v{S+z}, v{S+z}, v{S+z} row_ror:8")
        for pl in ("v_permlane16_swap_b32","v_permlane32_swap_b32"):
            for z in range(2): o(f"v_mov_b32 v{S+2+z}, v{S+z}")
            for z in range(2): o(f"{pl} v{S+z}, v{S+2+z}")
            o(f"v_pk_add_f32 {pr(S)}, {pr(S)}, {pr(S+2)}")
    def sums(o,src):
        o(f"v_pk_add_f32 {pr(S)}, {pr(src)}, {pr(src+2)}"); o(f"v_pk_mul_f32 {pr(S+2)}, {pr(src)}, {pr(src)}"); o(f"v_pk_mul_f32 {pr(S+4)}, {pr(src+2)}, {pr(src+2)}")
        for j in range(2,12):
            o(f"v_pk_add_f32 {pr(S)}, {pr(S)}, {pr(src+2*j)}"); k=S+2+2*(j&1); o(f"v_pk_fma_f32 {pr(k)}, {pr(src+2*j)}, {pr(src+2*j)}, {pr(k)}")
        o(f"v_pk_add_f32 {pr(S+2)}, {pr(S+2)}, {pr(S+4)}")
        o(f"v_add_f32 v{S}, v{S}, v{S+1}"); o(f"v_add_f32 v{S+1}, v{S+2}, v{S+3}")
        reduce3(o)
    def stats_fin(o,off,d0,d1):
        for w in range(3): o(f"ds_read_b64 {pr(S+4+2*w)}, v{vS1} offset:{off+64*w}")
        o(f"s_mov_b32 s{sT0}, 0x3ae38e39")
        o("s_waitcnt lgkmcnt(0)")
        o(f"v_pk_add_f32 {pr(S+4)}, {pr(S+4)}, {pr(S+6)}"); o(f"v_pk_add_f32 {pr(S+4)}, {pr(S+4)}, {pr(S+8)}")
        o(f"v_mul_f32 v{d0}, s{sT0}, v{S+4}"); o(f"v_mul_f32 v{d1}, s{sT0}, v{S+5}")
        o(f"v_fma_f32 v{d1}, -v{d0}, v{d0}, v{d1}"); o(f"v_max_f32 v{d1}, 0, v{d1}"); o(f"v_add_f32 v{d1}, 0x3727c5ac, v{d1}")
        o(f"v_rsq_f32 v{d1}, v{d1}"); o(f"v_mul_f32 v{d0}, -1.0, v{d0}"); o(f"v_mul_f32 v{d0}, v{d0}, v{d1}")
    def unpack(o,dst,src,n):
        for q in range(n):
            o(f"v_lshlrev_b32 v{dst+2*q}, 16, v{src+q}"); o(f"v_and_b32 v{dst+2*q+1}, s{sT2}, v{src+q}")
    def dma_setup():
        L=[]; o=L.append
        o(f"s_and_b32 s{sPAR}, s{sDS}, 1")
        o(f"s_lshr_b32 s{sT0}, s{sDS}, 1"); o(f"s_mul_i32 s{sT0}, s{sT0}, 9"); o(f"s_mul_i32 s{sT1}, s{sE}, 18"); o(f"s_add_u32 s{sT0}, s{sT0}, s{sT1}")
        o(f"s_add_u32 s{sKPS}, s{sT0}, 4"); o(f"s_mul_i32 s{sT1}, s{sPAR}, 5"); o(f"s_add_u32 s{sKPF}, s{sT0}, s{sT1}")
        o(f"v_lshrrev_b32 v244, 2, v{vLN}"); o(f"s_mul_i32 s{sT0}, s{sW}, 144"); o(f"v_add_u32 v244, s{sT0}, v244")
        o("v_mul_u32_u24 v244, 9216, v244")
        o(f"v_lshrrev_b32 v245, 4, v{vLN}"); o("v_and_b32 v245, 2, v245"); o(f"v_and_b32 v247, 3, v{vLN}"); o("v_xor_b32 v245, v245, v247")
        o(f"v_lshl_add_u32 v{VD0}, v245, 4, v244")
        o(f"s_lshl_b32 s{sT0}, s{sKPS}, 6"); o(f"v_add_u32 v{VD}, s{sT0}, v{VD0}")
        for i in range(9): o(f"s_mov_b32 s{sDM+i}, {i*16*9216-(i%4)*1024}")
        o(f"s_mul_i32 s{sLW}, s{sW}, 9216")
        return L
    def ln1(lb,packed):
        L=[]; o=L.append
        o(f"v_min_u32 v244, 53, v{vLN}"); o("v_lshlrev_b32 v246, 7, v244"); o(f"s_mov_b32 s{sFA}, {FM}")
        o(f"buffer_load_dword v{VP}, v246, {WS}, s{sFA} offen sc1 ; pm")
        for j in range(12 if packed else 24):
            o(f"v_pk_fma_f32 {pr(H+2*j)}, {pr(Q+2*j)}, {pr(ST)}, {pr(ST)} op_sel:[0,1,0] op_sel_hi:[1,1,0]" if packed else f"v_fma_f32 v{H+j}, v{Q+j}, v{ST+1}, v{ST}")
        o("@W:pm")
        for x in notready(0): o(x)
        o("s_nop 1"); o(f"s_cbranch_vccnz {name}_{lb}\n{name}_{lb}b:")
        slow.append((lb,246,sFA,0))
        def modld(v,dst,tag):
            o(f"s_mov_b32 s{sT1}, {MODF+v*2304}")
            for j in range(3):
                for hh in range(2): o(f"buffer_load_dwordx4 v[{dst+8*j+4*hh}:{dst+8*j+4*hh+3}], v{vMO}, {WS}, s{sT1} offen offset:{768*j+16*hh} sc1 ; {tag}")
        modld(1,MA,"m1"); modld(0,MB,"m0"); modld(2,MC,"m2")
        L2=[]; o=L2.append
        o("@W:m0")
        for j in range(12 if packed else 24):
            o(f"v_pk_fma_f32 {pr(H+2*j)}, {pr(H+2*j)}, {pr(MA+2*j)}, {pr(MB+2*j)}" if packed else f"v_fma_f32 v{H+j}, v{H+j}, v{MA+j}, v{MB+j}")
        modld(4,MA,"m4"); modld(3,MB,"m3")
        o("@W:m2")
        for j in range(12 if packed else 24):
            o(f"v_pk_mul_f32 {pr(H+2*j)}, {pr(H+2*j)}, {pr(MC+2*j)}" if packed else f"v_mul_f32 v{H+j}, v{H+j}, v{MC+j}")
        return L,L2
    def pre2():
        L=[]; o=L.append
        o(f"v_min_u32 v244, 23, v{vLN}")
        o("v_mul_u32_u24 v245, 43691, v244"); o("v_lshrrev_b32 v245, 17, v245")
        o("v_mul_u32_u24 v247, 3, v245"); o("v_sub_u32 v244, v244, v247")
        o(f"s_lshl_b32 s{sT0}, s{sW}, 3"); o(f"v_add_u32 v245, s{sT0}, v245")
        o("v_and_b32 v247, 3, v245"); o("v_lshrrev_b32 v245, 2, v245")
        o(f"s_and_b32 s{sT0}, s{sJ}, 28"); o(f"v_add_u32 v247, s{sT0}, v247")
        o("v_lshl_add_u32 v245, v247, 3, v245"); o("v_lshl_add_u32 v245, v245, 2, v244")
        o(f"v_mul_u32_u24 v{VPA}, {FSTR}, v245")
        o(f"s_lshr_b32 s{sT0}, s{sJ}, 2"); o(f"s_lshl_b32 s{sT0}, s{sT0}, 4")
        o(f"s_lshl_b32 s{sT1}, s{sW}, 2"); o(f"s_add_u32 s{sT0}, s{sT0}, s{sT1}")
        o(f"s_lshl_b32 s{sT1}, s{sPAR}, 1")
        for sl in range(4):
            o(f"s_xor_b32 s{sT2}, s{sT1}, {sl}"); o(f"s_add_u32 s{sT2}, s{sT2}, s{sT0}")
            o(f"s_mul_i32 s{sH2+sl}, s{sT2}, 18432"); o(f"s_add_u32 s{sH2+sl}, s{sH2+sl}, {H2}")
            o(f"s_mul_i32 s{sHS+sl}, s{sT2}, 147456"); o(f"s_add_u32 s{sHS+sl}, s{sHS+sl}, {HH}")
        o(f"v_lshrrev_b32 v244, 4, v{vLN}"); o(f"v_bfe_u32 v245, v{vLN}, 2, 2")
        o("v_lshl_add_u32 v245, v244, 3, v245"); o("v_lshlrev_b32 v245, 6, v245")
        o(f"v_and_b32 v247, 3, v{vLN}"); o("v_lshl_add_u32 v245, v247, 3, v245"); o("v_and_b32 v244, 1, v244")
        o(f"v_lshl_add_u32 v{VA[0]}, v244, 5, v245"); o(f"v_xor_b32 v{VA[1]}, 32, v{VA[0]}")
        for k in range(1,4):
            for t in range(2): o(f"v_add_u32 v{VA[2*k+t]}, {k*SLAB}, v{VA[t]}")
        o(f"v_mov_b32 v{VC1}, {fbits(C1)}"); o(f"s_mov_b32 s{sC0}, {fbits(C0)}")
        for j in range(1,5): o(f"v_add_u32 v{VOF-1+j}, {4096*j}, v{VL}")
        o(f"s_lshl_b32 s{sT0}, s{sKPS}, 10"); o(f"v_add_u32 v{VH}, s{sT0}, v{VL}")
        o(f"s_lshl_b32 s{sT0}, s{sKPF}, 6"); o(f"s_add_u32 s{sT0}, s{sT0}, 64"); o(f"v_add_u32 v{VD}, s{sT0}, v{VD0}")
        return L
    def pre3():
        L=[]; o=L.append
        o(f"s_and_b32 s{sT0}, s{sJ}, 28"); o(f"s_add_u32 s{sT0}, s{sT0}, s{sW}"); o(f"s_mul_i32 s{sT0}, s{sT0}, 54")
        o(f"v_min_u32 v247, 53, v{vLN}"); o(f"v_add_u32 v247, s{sT0}, v247")
        o("v_mul_u32_u24 v244, 43691, v247"); o("v_lshrrev_b32 v244, 17, v244")
        o("v_mul_u32_u24 v245, 3, v244"); o("v_sub_u32 v247, v247, v245")
        o("v_mul_u32_u24 v244, 9216, v244"); o("v_lshl_add_u32 v247, v247, 7, v244")
        o(f"s_min_u32 s{sT0}, s{sKPS}, s{sKPF}"); o(f"s_lshr_b32 s{sT0}, s{sT0}, 1"); o(f"s_lshl_b32 s{sT0}, s{sT0}, 7")
        o(f"v_add_u32 v149, s{sT0}, v247")
        o(f"s_lshr_b32 s{sKQ}, s{sE}, 1")
        o(f"s_and_b32 s{sKH}, s{sW}, 1"); o(f"s_lshr_b32 s{sRH}, s{sW}, 1")
        o(f"s_and_b32 s{sT0}, s{sE}, 1"); o(f"s_lshl_b32 s{sT0}, s{sT0}, 3")
        o(f"s_lshr_b32 s{sT1}, s{sJ}, 2"); o(f"s_add_u32 s{sRT2}, s{sT0}, s{sT1}")
        o(f"s_lshl_b32 s{sT0}, s{sRT2}, 3"); o(f"s_lshl_b32 s{sT1}, s{sRH}, 2"); o(f"s_add_u32 s{sT0}, s{sT0}, s{sT1}")
        o(f"s_lshl_b32 s{sT1}, s{sKQ}, 1"); o(f"s_add_u32 s{sT1}, s{sT1}, s{sKH}")
        o(f"s_mul_i32 s{sT1}, s{sT1}, {18*1024}"); o(f"s_add_u32 s{sT1}, s{sT1}, {HH}")
        for sl in range(4):
            o(f"s_xor_b32 s{sT2}, s{sKQ}, {sl}"); o(f"s_add_u32 s{sT2}, s{sT2}, s{sT0}")
            o(f"s_mul_i32 s{sT2}, s{sT2}, 147456"); o(f"s_add_u32 s{sHL+sl}, s{sT2}, s{sT1}")
        o(f"s_mul_i32 s{sWO}, s{sKQ}, {1152*1152}")
        o(f"s_mul_i32 s{sT0}, s{sW}, 576"); o(f"s_mov_b32 s{sT1}, 238609295"); o(f"s_mul_i32 s{sT2}, s{sDS}, 288")
        for i in range(9):
            o(f"v_add_u32 v244, {64*i}, v{vLN}"); o(f"v_add_u32 v244, s{sT0}, v244"); o(f"v_mul_hi_u32 v245, v244, s{sT1}")
            o("v_mul_u32_u24 v246, 18, v245"); o("v_sub_u32 v244, v244, v246")
            o("v_lshrrev_b32 v246, 5, v245"); o("v_lshl_add_u32 v245, v246, 8, v245")
            o("v_mul_u32_u24 v245, 1152, v245"); o("v_lshl_add_u32 v245, v244, 4, v245"); o(f"v_add_u32 v{VDT+i}, s{sT2}, v245")
        o(f"s_lshl_b32 s{sT0}, s{sJ}, 2"); o(f"s_add_u32 s{sT0}, s{sT0}, s{sW}"); o(f"s_mul_i32 s{sT0}, s{sT0}, {27*128}"); o(f"s_add_u32 s{sT0}, s{sT0}, s{sWO}")
        o(f"v_min_u32 v244, 26, v{vLN}"); o(f"v_lshl_add_u32 v{VPF}, v244, 7, s{sT0}")
        o(f"v_lshrrev_b32 v244, 2, v{vLN}"); o("v_mul_u32_u24 v244, 288, v244"); o(f"v_and_b32 v245, 3, v{vLN}"); o("v_lshl_add_u32 v244, v245, 3, v244")
        o(f"s_mul_i32 s{sT0}, s{sKH}, 18432"); o(f"v_add_u32 v{VA2}, s{sT0}, v244"); o(f"v_add_u32 v{VA2+1}, {2*SLAB}, v{VA2}")
        o(f"v_and_b32 v244, 3, v{vLN}")
        o(f"s_lshr_b32 s{sT0}, s{sRT2}, 1"); o(f"s_lshl_b32 s{sT0}, s{sT0}, 2"); o(f"v_add_u32 v245, s{sT0}, v244")
        o(f"s_lshl_b32 s{sT0}, s{sKQ}, 1"); o(f"s_add_u32 s{sT0}, s{sT0}, s{sKH}"); o(f"v_lshl_add_u32 v245, v245, 3, s{sT0}")
        o(f"s_and_b32 s{sT0}, s{sRT2}, 1"); o(f"s_lshl_b32 s{sT0}, s{sT0}, 1"); o(f"s_add_u32 s{sT0}, s{sT0}, s{sRH}")
        o(f"v_lshl_add_u32 v245, v245, 2, s{sT0}")
        o(f"s_mov_b32 s{sFA}, {F4}"); o(f"v_mul_u32_u24 v{VPB}, {FSTR}, v245")
        o(f"v_mov_b32 v148, s{sTAG}")
        o(f"v_min_u32 v159, 47, v{vLN}"); o("v_lshlrev_b32 v159, 8, v159")
        return L

    HL=220; HE=OPT.get('he',0)
    def hloads(guard):
        lb=a.newlabel(f"{name}_nh")
        if guard: a("s_cmp_ge_u32 s2, 144"); a(f"s_cbranch_scc1 {lb}")
        a(f"s_mul_i32 s{sT1}, s{sE}, 18"); a(f"s_add_u32 s{sT1}, s{sT1}, s{sJ}"); a(f"s_lshl_b32 s{sT1}, s{sT1}, 2"); a(f"s_add_u32 s74, s{sT1}, s{sW}")
        a(f"s_lshl_b32 s{sT1}, s74, 12")
        a(f"s_add_u32 s{sX}, s52, s{sT1}"); a(f"s_addc_u32 s{sX+1}, s53, 0"); fin_srd(sX,4096)
        a(f"v_lshlrev_b32 v250, 4, v{vLN}"); a(f"v_subrev_u32 v251, 16, v250")
        for i in range(4):
            a(f"buffer_load_dwordx4 v[{HL+6*i}:{HL+6*i+3}], v250, s[{sX}:{sX+3}], 0 offen offset:{1024*i} {OPT.get('hld','nt')}")
            a(f"buffer_load_dword v{HL+6*i+4}, v250, s[{sX}:{sX+3}], 0 offen offset:{1024*i+16} {OPT.get('hld','nt')}")
        a(f"buffer_load_dword v{HL+28}, v251, s[{sX}:{sX+3}], 0 offen")
        a(f"s_mov_b32 s{sX+4}, s54"); a(f"s_mov_b32 s{sX+5}, s55"); fin_srd(sX+4,SZ['ssmD'])
        a(f"s_lshl_b32 s{sT1}, s74, 1")
        a(f"buffer_load_ushort v{HL+29}, off, s[{sX+4}:{sX+7}], s{sT1}")
        a.label(lb)
    kernel_begin(a, name)
    a("s_cmp_ge_u32 s2, 256")
    a(f"s_cbranch_scc1 {name}_end")
    stamp('start')
    a(f"s_load_dwordx4 s[40:43], s[0:1], {KA['k']}")
    a(f"s_load_dwordx2 s[44:45], s[0:1], {KA['shift']}")
    a(f"s_load_dwordx2 s[{sWS}:{sWS+1}], s[0:1], {KA['ws']}")
    a(f"s_load_dwordx2 s[{sQO}:{sQO+1}], s[0:1], {KA['q']}")
    a("s_cmp_ge_u32 s2, 144")
    a(f"s_cselect_b32 s{sT0}, {KA['c']}, {KA['ssmk']}")
    a(f"s_load_dwordx4 s[52:55], s[0:1], s{sT0}")
    a(f"s_load_dwordx2 s[{sWG}:{sWG+1}], s[0:1], {KA['wg']}")
    a(f"s_load_dwordx2 s[{sWU}:{sWU+1}], s[0:1], {KA['wu']}")
    a(f"s_load_dwordx2 s[{sWD}:{sWD+1}], s[0:1], {KA['wd']}")
    a(f"s_load_dwordx2 s[{sOUT}:{sOUT+1}], s[0:1], {KA['out']}")
    a(f"s_and_b32 s{sE}, s2, 7"); a(f"s_lshr_b32 s{sJ}, s2, 3")
    if OPT.get('cpf',1):
        a(f"s_getpc_b64 s[46:47]")
        a.label(f"{name}_pc")
        a(f"v_lshl_add_u32 v2, v0, 5, s{sJ}"); a("v_lshlrev_b32 v2, 7, v2")
        a(f"v_min_u32 v2, {name}_end-{name}_pc, v2")
        a("v_mov_b32 v3, s47"); a("v_add_co_u32 v2, vcc, s46, v2"); a("v_addc_co_u32 v3, vcc, 0, v3, vcc")
        a("global_load_dword v192, v[2:3], off")
    a("v_lshrrev_b32 v1, 6, v0")
    a(f"v_readfirstlane_b32 s{sW}, v1")
    a(f"s_and_b32 s{sDS}, s{sJ}, 3")
    a(f"s_lshl_b32 s{sT0}, s{sE}, 2"); a(f"s_add_u32 s{sT0}, s{sT0}, s{sDS}")
    a(f"s_lshr_b32 s{sT1}, s{sJ}, 2"); a(f"s_lshl_b32 s{sT1}, s{sT1}, 5"); a(f"s_add_u32 s{sRB}, s{sT0}, s{sT1}")
    a(f"s_mul_i32 s{sT2}, s{sRB}, 9216")
    a(f"v_and_b32 v{vLN}, 63, v0"); a(f"v_lshlrev_b32 v{VL}, 4, v{vLN}")
    a(f"s_cmp_eq_u32 s{sW}, 3")
    a(f"s_cbranch_scc1 {name}_e3")
    a("v_cmp_gt_u32 vcc, 0x90, v0")
    a("v_mov_b32 v2, 0x7ff00000")
    a(f"v_lshl_add_u32 v5, v0, 3, s{sT2}")
    a(f"v_lshl_add_u32 v8, v0, 6, s{sT2}")
    a("v_cndmask_b32 v5, v2, v5, vcc"); a("v_cndmask_b32 v8, v2, v8, vcc")
    a("v_subrev_u32 v6, 3456, v5"); a("v_lshlrev_b32 v7, 5, v0")
    a(f"v_and_b32 v{vN}, 7, v0"); a(f"v_lshrrev_b32 v{vCL}, 3, v0")
    a(f"v_mul_u32_u24 v{vQO}, 1152, v{vN}"); a(f"v_lshl_add_u32 v{vQO}, v{vCL}, 4, v{vQO}")
    a("s_mov_b32 s46, 4608")
    a("s_waitcnt lgkmcnt(0)")
    LD=OPT.get('ld','nt')
    a(f"s_mov_b32 s{sX}, s40"); a(f"s_mov_b32 s{sX+1}, s41"); fin_srd(sX,SZ['k'])
    K=12; V=34; W=52
    for i in range(3): a(f"buffer_load_dwordx2 {pr(K+2*i)}, v6, s[{sX}:{sX+3}], 0 offen offset:{i*1152} {LD}")
    for r in range(8): a(f"buffer_load_dwordx2 {pr(K+6+2*r)}, v5, s[{sX}:{sX+3}], {'0' if r<4 else 's46'} offen offset:{(r%4)*1152} {LD}")
    a(f"s_mov_b32 s{sX+4}, s44"); a(f"s_mov_b32 s{sX+5}, s45"); fin_srd(sX+4,SZ['shift'])
    a(f"buffer_load_dwordx4 v[{W}:{W+3}], v7, s[{sX+4}:{sX+7}], 0 offen")
    a(f"buffer_load_dwordx4 v[{W+4}:{W+7}], v7, s[{sX+4}:{sX+7}], 0 offen offset:16 ; kk")
    a("s_mov_b32 s40, s42"); a("s_mov_b32 s41, s43"); fin_srd(40,SZ['v'])
    for r in range(8): a(f"buffer_load_dwordx2 {pr(V+2*r)}, v5, s[40:43], {'0' if r<4 else 's46'} offen offset:{(r%4)*1152} {LD} ; vv")
    fin_srd(sWS,WSEND); fin_srd(sQO,SZ['q'])
    a(f"s_mov_b32 s{sT0}, {EPO}")
    a(f"buffer_load_dword v{VTG}, off, {WS}, s{sT0} sc1 ; ep")
    for j in range(3): a(f"buffer_load_dwordx4 v[{Qr+4*j}:{Qr+4*j+3}], v{vQO}, s[{sQO}:{sQO+3}], s{sT2} offen offset:{384*j} {LD} ; q")
    for s_,sz in ((sWG,SZ['wg']),(sWU,SZ['wu']),(sWD,SZ['wd'])): fin_srd(s_,sz)
    a("v_add_u32 v9, 16, v8"); a("v_add_u32 v10, 32, v8"); a("v_add_u32 v11, 48, v8")
    a(f"s_mov_b32 s{sT2}, 0xffff0000")
    KF=60; WF=82; O=90; T=106; P=140
    E("@W:kk")
    stamp('k')
    for hp in range(2):
        for j in range(4):
            for c in range(2):
                src=W+4*hp+2*c+(j>>1)
                a(f"v_and_b32 v{WF+2*j+c}, s{sT2}, v{src}" if j&1 else f"v_lshlrev_b32 v{WF+2*j+c}, 16, v{src}")
        for i in range(11):
            a(f"v_lshlrev_b32 v{KF+2*i}, 16, v{K+2*i+hp}"); a(f"v_and_b32 v{KF+2*i+1}, s{sT2}, v{K+2*i+hp}")
        for r in range(8): a(f"v_pk_mul_f32 {pr(O+2*r)}, {pr(KF+2*r)}, {pr(WF+6)}")
        for j in (2,1,0):
            for r in range(8): a(f"v_pk_fma_f32 {pr(O+2*r)}, {pr(KF+2*(r+3-j))}, {pr(WF+2*j)}, {pr(O+2*r)}")
        if hp==0:
            E("@W:vv")
            if HE: hloads(True)
        for r in range(8):
            a(f"v_lshlrev_b32 v{T+2*r}, 16, v{V+2*r+hp}"); a(f"v_and_b32 v{T+2*r+1}, s{sT2}, v{V+2*r+hp}")
        for r in range(8): a(f"v_pk_mul_f32 {pr(O+2*r)}, {pr(O+2*r)}, {pr(T+2*r)}")
        for c in range(2):
            for q in range(4): a(f"v_cvt_pk_bf16_f32 v{P+8*hp+4*c+q}, v{O+2*(7-2*q)+c}, v{O+2*(6-2*q)+c}")
    def sw(op,x,y):
        for q in range(4): a(f"{op} v{P+4*x+q}, v{P+4*y+q}")
        a(f"{op} v{8+x}, v{8+y}")
    sw("v_permlane32_swap_b32",0,2); sw("v_permlane32_swap_b32",1,3)
    sw("v_permlane16_swap_b32",0,1); sw("v_permlane16_swap_b32",2,3)
    assert XT==0
    for x in range(4): a(f"buffer_store_dwordx4 v[{P+4*x}:{P+4*x+3}], v{8+x}, {WS}, 0 offen sc1 ; xt")
    a(f"v_lshlrev_b32 v{VL}, 4, v{vLN}")
    stamp('xt')
    a(f"s_lshl_b32 s{sT0}, s{sW}, 6"); a(f"s_add_u32 s{sT0}, s{sT0}, {LST1}")
    a(f"v_lshl_add_u32 v{vS0}, v{vN}, 3, s{sT0}")
    a("s_waitcnt vmcnt(4)" if not HE else "s_waitcnt vmcnt(4)")
    unpack(a,Q,Qr,12)
    sums(a,Q)
    a(f"ds_write_b64 v{vS0}, {pr(S)}")
    a(f"s_branch {name}_ej")
    c0=len(a.l)
    a.label(f"{name}_e3")
    for i in range(4): a(f"v_mov_b32 v{12+i}, -1")
    a(f"v_and_b32 v{vN}, 7, v0"); a(f"v_lshrrev_b32 v{vCL}, 3, v0")
    a(f"s_add_u32 s{sT2}, s{sT2}, {YO}")
    a("s_waitcnt lgkmcnt(0)")
    fin_srd(sWS,WSEND)
    a(f"s_mov_b32 s{sT0}, {EPO}")
    a(f"buffer_load_dword v{VTG}, off, {WS}, s{sT0} sc1")
    for reg in [0]+([H2-YO] if OPT.get('h2s') else []):
        a(f"s_add_u32 s{sT0}, s{sT2}, {reg}")
        for i in range(9):
            if i and i%4==0: a(f"s_add_u32 s{sT0}, s{sT0}, 4096")
            a(f"buffer_store_dwordx4 v[12:15], v{VL}, {WS}, s{sT0} offen offset:{(i%4)*1024} sc1")
    for s_,sz in ((sQO,SZ['q']),(sWG,SZ['wg']),(sWU,SZ['wu']),(sWD,SZ['wd'])): fin_srd(s_,sz)
    if HE: hloads(True)
    if OPT.get('pfm',0):
        a(f"s_load_dwordx2 s[40:41], s[0:1], {KA['wmod']}")
        a(f"s_lshl_b32 s{sT0}, s{sJ}, 7"); a(f"v_add_u32 v3, s{sT0}, v{vLN}")
        for i in range(2):
            if i: a("v_add_u32 v3, 64, v3")
            a("v_mul_u32_u24 v4, 7282, v3"); a("v_lshrrev_b32 v4, 22, v4")
            a("v_mul_u32_u24 v5, 576, v4"); a("v_sub_u32 v5, v3, v5"); a("v_mul_u32_u24 v5, 6912, v5")
            a(f"v_lshl_add_u32 v4, v4, 3, s{sE}"); a("v_min_u32 v4, 53, v4"); a(f"v_lshl_add_u32 v{6+i}, v4, 7, v5")
    a(f"s_sub_u32 s{sG}, s2, 144"); a(f"s_cmp_ge_u32 s{sG}, 54")
    a(f"s_cbranch_scc1 {name}_e3x")
    a(f"s_mov_b32 s{sX}, s52"); a(f"s_mov_b32 s{sX+1}, s53"); fin_srd(sX,SZ['c'])
    a(f"v_lshlrev_b32 v2, 2, v{vLN}")
    for i in range(5): a(f"buffer_load_dword v{16+i}, v2, s[{sX}:{sX+3}], 0 offen offset:{256*i}")
    a("s_waitcnt vmcnt(0)")
    a(f"s_mov_b32 s{sT2}, 0xffff0000"); a(f"s_mov_b32 s{sT1}, 0xbfb8aa3b")
    unpack(a,22,16,5)
    for i in range(10): a(f"v_mul_f32 v{32+i}, s{sT1}, v{22+i}")
    for i in range(10): a(f"v_exp_f32 v{32+i}, v{32+i}")
    for i in range(10): a(f"v_add_f32 v{32+i}, 1.0, v{32+i}")
    for i in range(10): a(f"v_rcp_f32 v{32+i}, v{32+i}")
    for i in range(10): a(f"v_mul_f32 v{22+i}, v{22+i}, v{32+i}")
    for i in range(5):
        a(f"v_cvt_pk_bf16_f32 v{16+i}, v{22+2*i}, v{23+2*i}")
        a(f"ds_write_b32 v2, v{16+i} offset:{MSI+256*i}")
    a.label(f"{name}_e3x")
    if OPT.get('pfm',0):
        a("s_waitcnt vmcnt(0) lgkmcnt(0)")
        fin_srd(40,SZ['wmod'])
        for i in range(2): a(f"buffer_load_dword v{194+i}, v{6+i}, s[40:43], 0 offen {OPT.get('pfmp','')}")
        a(f"s_branch {name}_ej2")
    a.label(f"{name}_ej")
    a("s_waitcnt vmcnt(0)")
    a.label(f"{name}_ej2")
    a(f"v_readfirstlane_b32 s{sEP}, v{VTG}")
    a(f"s_lshr_b32 s{sT0}, s{sRB}, 1"); a(f"s_mul_i32 s{sT0}, s{sT0}, 18432")
    for j in range(3): a(f"s_add_u32 s{sY+j}, s{sT0}, {YO+6144*j}")
    a(f"s_and_b32 s{sT0}, s{sRB}, 1"); a(f"s_lshl_b32 s{sT0}, s{sT0}, 3"); a(f"v_add_u32 v244, s{sT0}, v{vN}")
    a(f"v_lshlrev_b32 v245, 8, v{vCL}")
    a(f"v_lshl_add_u32 v{vHO}, v244, 4, v245"); a(f"v_lshl_add_u32 v{vYO}, v244, 3, v245")
    a(f"v_lshlrev_b32 v{vMO}, 5, v{vCL}")
    a(f"v_lshlrev_b32 v{vS1}, 3, v{vN}"); a(f"v_add_u32 v{vS1}, {LST1}, v{vS1}")
    a(f"s_lshl_b32 s{sT0}, s2, 2"); a(f"s_add_u32 s{sT0}, s{sT0}, s{sW}")
    a(f"s_mul_i32 s{sSB}, s{sT0}, {FSTR}")
    a(f"s_mul_i32 s{sPO}, s{sT0}, {PSTR}"); a(f"s_add_u32 s{sPO}, s{sPO}, {PART}")
    a("s_waitcnt lgkmcnt(0)")
    a("s_barrier")
    a(f"s_mul_i32 s{sTAG}, s{sEP}, 0x9E3779B1"); a(f"s_add_u32 s{sTAG}, s{sTAG}, 0x7F4A7C15")
    a(f"s_lshl_b32 s{sG}, s{sRB}, 7")
    a(f"s_cmp_lg_u32 s{sW}, 0")
    a(f"s_cbranch_scc1 {name}_nf")
    for x in flagstore(FS,0,sG): a(x)
    a.label(f"{name}_nf")
    stamp('fs')
    a("s_cmp_ge_u32 s2, 144")
    a(f"s_cbranch_scc1 {name}_oth")
    CS=4160; XS=4640; CB=KS_LDS-8*CS-4*XS; XB=CB+8*CS; STG=CB
    vX,vS=250,255; vHb=[251,252,253,254]
    a(f"s_mul_i32 s{sG}, s{sE}, 18"); a(f"s_add_u32 s{sG}, s{sG}, s{sJ}")
    a(f"s_lshl_b32 s{sT0}, s{sG}, 2")
    XL=16
    if not HE: hloads(False)
    a("v_lshrrev_b32 v3, 2, v0"); a("v_and_b32 v4, 3, v0")
    a("v_mul_u32_u24 v5, 9216, v3"); a(f"v_add_u32 v8, s{sT0}, v4"); a("v_lshl_add_u32 v5, v8, 4, v5")
    a(f"v_mul_u32_u24 v8, {XS}, v4"); a("v_lshl_add_u32 v8, v3, 4, v8"); a(f"v_add_u32 v8, {XB+512}, v8")
    a(f"v_and_b32 v2, 15, v{vLN}"); a(f"v_lshrrev_b32 v15, 4, v{vLN}")
    a(f"s_lshl_b32 s{sT0}, s{sW}, 4"); a(f"v_lshl_add_u32 v10, v15, 6, s{sT0}"); a("v_add_u32 v10, v10, v2"); a("v_lshlrev_b32 v10, 7, v10")
    stats_fin(a,0,ST,ST+1)
    for x in dma_setup(): a(x)
    for i in range(4): a(f"v_mov_b32 v{HL+24+i}, 0")
    a(f"s_mul_i32 s{sT0}, s{sW}, {XS}"); a(f"s_add_u32 s{sT0}, s{sT0}, {XB}")
    a(f"v_add_u32 v12, s{sT0}, v{VL}")
    a("s_mov_b32 exec_hi, 0")
    a(f"ds_write_b128 v12, v[{HL+24}:{HL+27}]")
    a("s_mov_b64 exec, -1")
    a(f"s_mul_i32 s{sT1}, s{sW}, {2*CS}"); a(f"s_add_u32 s{sT1}, s{sT1}, {CB}")
    a(f"v_add_u32 v13, s{sT1}, v{VL}")
    a("v_lshlrev_b32 v3, 1, v2"); a("v_sub_u32 v3, v3, v15"); a("v_add_u32 v3, 5, v3")
    a(f"v_lshl_add_u32 v{vX}, v3, 4, s{sT0}")
    a("v_add_u32 v4, 1, v2"); a("v_and_b32 v3, 1, v4"); a("v_sub_u32 v4, v4, v3")
    a("v_lshl_add_u32 v4, v15, 3, v4"); a("v_lshlrev_b32 v4, 1, v4")
    a(f"v_mul_u32_u24 v3, {CS}, v3")
    a(f"v_add3_u32 v{vHb[0]}, v4, v3, s{sT1}")
    for k in range(1,4): a(f"v_add_u32 v{vHb[k]}, {1024*k}, v{vHb[0]}")
    a("v_lshlrev_b32 v12, 9, v15"); a("v_lshl_add_u32 v12, v2, 3, v12")
    a(f"s_lshl_b32 s{sT0}, s{sW}, 1"); a(f"s_add_u32 s{sT0}, s{sT0}, {STG}")
    a(f"v_add_u32 v{vS}, s{sT0}, v12")
    a("v_lshl_add_u32 v3, v15, 3, v2"); a("v_sub_u32 v3, 15, v3")
    a("v_and_b32 v1, 1, v3"); a("v_lshlrev_b32 v1, 4, v1"); a("v_ashrrev_i32 v3, 1, v3")
    for q in range(4): a(f"v_cmp_eq_u32 s[{50+2*q}:{51+2*q}], {q}, v3")
    T=72
    def copies(base, off, tset):
        t=T+tset*4
        a(f"ds_write_b128 v13, v[{base}:{base+3}] offset:{off}")
        for q in range(4): a(f"v_alignbit_b32 v{t+q}, v{base+q+1}, v{base+q}, 16")
        a(f"ds_write_b128 v13, v[{t}:{t+3}] offset:{off+CS}")
    for i in range(4):
        a(f"s_waitcnt vmcnt({8-2*i})")
        if i==0: stamp('h')
        copies(HL+6*i, 32+1024*i, i)
    a("s_waitcnt vmcnt(0)")
    a("s_mov_b64 exec, 3")
    copies(HL+24, 0, 4)
    a("s_mov_b64 exec, -1")
    DF=96
    a(f"v_lshlrev_b32 v1, v1, v{HL+29}")
    for q in range(4): a(f"v_cndmask_b32 v{DF+q}, 0, v1, s[{50+2*q}:{51+2*q}]")
    a(f"s_mov_b32 s{sT1}, {FS}")
    spin(f"{name}_p1",[f"buffer_load_dword v{VP}, v10, {WS}, s{sT1} offen sc1"],notready(0))
    stamp('s1')
    for i in range(4):
        a(f"s_mov_b32 s{sT0}, {XT+i*64*9216}")
        a(f"buffer_load_dwordx4 v[{XL+4*i}:{XL+4*i+3}], v5, {WS}, s{sT0} offen sc1")
    for i in range(4):
        a(f"s_waitcnt vmcnt({3-i})")
        a(f"ds_write_b128 v8, v[{XL+4*i}:{XL+4*i+3}] offset:{1024*i}")
    a("s_waitcnt lgkmcnt(0)")
    a("s_barrier")
    stamp('cv0')
    CA=100
    def xreg(buf,w): return f"a[{64*buf+4*w}:{64*buf+4*w+3}]"
    def hreg(buf,u,half=None):
        b=64*buf+32+4*u
        return f"a[{b}:{b+3}]" if half is None else f"a[{b+2*half}:{b+2*half+1}]"
    def creads(p):
        buf=p&1; L=[]
        for z in range(8):
            L.append(f"ds_read_b128 {xreg(buf,7-z)}, v{vX} offset:{512*(7-z)+64*(7-p)}")
            o0=128*(z&1)+16*p
            L.append(f"ds_read2_b32 {hreg(buf,z,0)}, v{vHb[z>>1]} offset0:{o0} offset1:{o0+1}")
            L.append(f"ds_read2_b32 {hreg(buf,z,1)}, v{vHb[z>>1]} offset0:{o0+2} offset1:{o0+3}")
        return L
    for x in creads(0): a(x)
    a(f"s_or_b32 s{sT0}, s2, s{sW}"); a(f"s_cmp_lg_u32 s{sT0}, 0")
    a(f"s_cbranch_scc1 {name}_ne")
    a(f"s_add_u32 s{sT0}, s{sEP}, 1"); a(f"v_mov_b32 v{VF}, s{sT0}"); a(f"s_mov_b32 s{sT0}, {EPO}")
    a("s_mov_b64 exec, 1"); a(f"buffer_store_dword v{VF}, off, {WS}, s{sT0} sc1"); a("s_mov_b64 exec, -1")
    a.label(f"{name}_ne")
    a("s_waitcnt lgkmcnt(0)")
    mf=[]; reads={}; sc={}
    for p in range(8):
        buf=p&1; base=len(mf)
        if p==0:
            for c in range(8): mf.append(f"v_mfma_f32_16x16x32_bf16 v[{CA+4*c}:{CA+4*c+3}], {xreg(0,c)}, v[{DF}:{DF+3}], 0")
        for c in range(7,-1,-1):
            for u in range(c+1):
                acc=f"v[{CA+4*c}:{CA+4*c+3}]"
                mf.append(f"v_mfma_f32_16x16x32_bf16 {acc}, {xreg(buf,c-u)}, {hreg(buf,u)}, {acc}")
        if p<7:
            for k,x in enumerate(creads(p+1)): reads[base+k]=x
            sc[len(mf)-1]=["s_waitcnt lgkmcnt(0)"]
    D0=OPT.get('d0',0); D1=OPT.get('d1',15)
    merged=[]
    for i,(p,x) in enumerate(dma(0,"d0")):
        if p: merged.append((p,D0+D1*i))
        merged.append((x,D0+D1*i))
    LNIN=OPT.get('lnin',0)
    l1,l2=ln1("slm",not LNIN)
    if not LNIN:
        merged+=[(x,OPT.get('lg1',270)) for x in l1[:4]]
        merged.sort(key=lambda x:x[1])
    else:
        G1=OPT.get('lg1',120)
        stream=[(x,G1) for x in l1]+[(x,G1+60) for x in l2]
        vm=merged; merged=[]; est=G1; k=0
        for x,g in stream:
            est=max(est,g)
            while k<len(vm) and vm[k][1]<=est: merged.append(vm[k]); k+=1
            merged.append((x,g)); est+=1.15
        merged+=vm[k:]
        l1=l2=[]
    print("conv",schedule_stream(E,mf,reads,sc,merged))
    stamp('cv1')
    a("s_barrier")
    EP=180
    for c in range(7,-1,-1):
        a(f"v_cvt_pk_bf16_f32 v{EP+2*c}, v{CA+4*c}, v{CA+4*c+1}")
        a(f"v_cvt_pk_bf16_f32 v{EP+1+2*c}, v{CA+4*c+2}, v{CA+4*c+3}")
        a(f"ds_write_b16 v{vS}, v{EP+2*c} offset:{2048*c}")
        a(f"ds_write_b16_d16_hi v{vS}, v{EP+2*c} offset:{2048*c+128}")
        a(f"ds_write_b16 v{vS}, v{EP+1+2*c} offset:{2048*c+256}")
        a(f"ds_write_b16_d16_hi v{vS}, v{EP+1+2*c} offset:{2048*c+384}")
    a("v_lshlrev_b32 v244, 4, v0"); a(f"v_add_u32 v244, {STG}, v244")
    a(f"v_mul_u32_u24 v245, 18432, v{vCL}"); a(f"v_lshl_add_u32 v245, v{vN}, 4, v245")
    a(f"s_lshl_b32 s{sT0}, s{sG}, 7"); a(f"v_add_u32 v245, s{sT0}, v245")
    a("s_waitcnt lgkmcnt(0)")
    a("s_barrier")
    for i in range(4): a(f"ds_read_b128 v[{CA+4*i}:{CA+3+4*i}], v244 offset:{4096*i}")
    for i in range(4):
        a(f"s_mov_b32 s{sT0}, {YO+i*32*18432}")
        a(f"s_waitcnt lgkmcnt({3-i})")
        for q in range(4): a(f"v_min_u32 v{CA+4*i+q}, 0xfffffffe, v{CA+4*i+q}")
        a(f"buffer_store_dwordx4 v[{CA+4*i}:{CA+3+4*i}], v245, {WS}, s{sT0} offen sc1")
    stamp('t0')
    for x in l1[4:]+l2: E(x)
    a(f"s_branch {name}_ln")
    a.label(f"{name}_oth")
    a("s_cmp_ge_u32 s2, 198")
    a(f"s_cbranch_scc1 {name}_spare")
    a(f"s_mov_b32 s{sX+4}, s54"); a(f"s_mov_b32 s{sX+5}, s55"); fin_srd(sX+4,SZ['wmod'])
    a(f"v_lshrrev_b32 v3, 3, v{vLN}"); a(f"s_mul_i32 s{sT0}, s{sW}, 144"); a(f"v_add_u32 v4, s{sT0}, v3"); a("v_mul_u32_u24 v4, 6912, v4")
    a("v_and_b32 v3, 2, v3"); a(f"v_and_b32 v5, 7, v{vLN}"); a("v_xor_b32 v3, v3, v5")
    a(f"s_sub_u32 s{sT0}, s2, 144"); a(f"s_lshl_b32 s{sT0}, s{sT0}, 7")
    a("v_lshl_add_u32 v5, v3, 4, v4"); a(f"v_add_u32 v5, s{sT0}, v5")
    a("v_xor_b32 v3, 4, v3"); a("v_lshl_add_u32 v4, v3, 4, v4"); a(f"v_add_u32 v4, s{sT0}, v4")
    a(f"s_mul_i32 s{sT1}, s{sW}, 18432")
    for i in range(18):
        a(f"s_add_u32 m0, s{sT1}, {MW+i*1024}"); a(f"s_mov_b32 s{sT0}, {i*8*6912}")
        a(f"buffer_load_dwordx4 v{4 if i&1 else 5}, s[{sX+4}:{sX+7}], s{sT0} offen {LD} lds")
    stats_fin(a,0,ST,ST+1)
    a(f"v_lshrrev_b32 v2, 4, v{vLN}"); a(f"v_bfe_u32 v3, v{vLN}, 2, 2")
    a("v_lshl_add_u32 v4, v2, 3, v3"); a("v_lshlrev_b32 v4, 7, v4")
    a("v_lshrrev_b32 v3, 1, v3"); a("v_and_b32 v5, 1, v2"); a("v_lshl_add_u32 v3, v5, 1, v3")
    a(f"v_xor_b32 v3, s{sW}, v3"); a("v_lshl_add_u32 v4, v3, 5, v4")
    a(f"v_and_b32 v3, 3, v{vLN}"); a("v_lshl_add_u32 v4, v3, 3, v4"); a(f"v_add_u32 v4, {MW}, v4")
    a(f"v_add_u32 v5, {9*4096}, v4")
    a(f"v_lshlrev_b32 v8, 4, v2"); a(f"v_add_u32 v8, {MSI}, v8")
    a("s_waitcnt vmcnt(0)")
    a("s_barrier")
    stamp('h')
    for ks_ in range(18):
        a(f"ds_read_b128 v[{32+4*ks_}:{35+4*ks_}], v8 offset:{64*ks_}")
        for hf in range(2): a(f"ds_read_b64_tr_b16 a[{4*ks_+2*hf}:{4*ks_+2*hf+1}], v{4 if ks_<9 else 5} offset:{(ks_%9)*4096+hf*512}")
        if ks_>=3:
            k_=ks_-3
            a("s_waitcnt lgkmcnt(9)")
            a(f"v_mfma_f32_16x16x32_bf16 v[12:15], a[{4*k_}:{4*k_+3}], v[{32+4*k_}:{35+4*k_}], {'0' if k_==0 else 'v[12:15]'}")
    for k_ in range(15,18):
        a(f"s_waitcnt lgkmcnt({3*(17-k_)})")
        a(f"v_mfma_f32_16x16x32_bf16 v[12:15], a[{4*k_}:{4*k_+3}], v[{32+4*k_}:{35+4*k_}], v[12:15]")
    a(f"s_sub_u32 s{sG}, s2, 144")
    a(f"s_sub_u32 s{sT0}, s{sG}, 9"); a(f"s_cmp_lt_u32 s{sT0}, 9"); a(f"s_cselect_b32 s{sT1}, 1.0, 0")
    a(f"s_sub_u32 s{sT0}, s{sG}, 36"); a(f"s_cmp_lt_u32 s{sT0}, 9"); a(f"s_cselect_b32 s{sT1}, 1.0, s{sT1}")
    a(f"s_lshl_b32 s{sT0}, s{sG}, 8"); a(f"s_lshl_b32 s{sT2}, s{sW}, 6"); a(f"s_add_u32 s{sT0}, s{sT0}, s{sT2}"); a(f"s_add_u32 s{sT0}, s{sT0}, {MODF}")
    a("v_lshlrev_b32 v4, 4, v2")
    for q in range(4): a(f"v_cvt_pk_bf16_f32 v{12+q}, v{12+q}, v{12+q}")
    for q in range(4): a(f"v_lshlrev_b32 v{12+q}, 16, v{12+q}")
    for q in range(4): a(f"v_add_f32 v{12+q}, s{sT1}, v{12+q}")
    for q in range(4): a(f"v_cvt_pk_bf16_f32 v{12+q}, v{12+q}, v{12+q}")
    for q in range(4): a(f"v_lshlrev_b32 v{12+q}, 16, v{12+q}")
    a("s_mov_b32 exec_lo, 0x00010001"); a("s_mov_b32 exec_hi, 0x00010001")
    a(f"buffer_store_dwordx4 v[12:15], v4, {WS}, s{sT0} offen sc1")
    a("s_mov_b64 exec, -1")
    a(f"s_lshl_b32 s{sG}, s{sG}, 7")
    a("s_waitcnt vmcnt(0)")
    a("s_barrier")
    a(f"s_cmp_lg_u32 s{sW}, 0")
    a(f"s_cbranch_scc1 {name}_mx")
    for x in flagstore(FM,0,sG): a(x)
    a.label(f"{name}_mx")
    for x in dma_setup(): a(x)
    emit_vm(dma(0,"d0"))
    LATE=OPT.get('late',''); WDW=OPT.get('wdw',0)
    def wdwarm(first,base):
        per,n=(768,3) if not WDW else (384,2)
        a(f"s_sub_u32 s{sT0}, s2, {base-first*0}"); a(f"s_add_u32 s{sT0}, s{sT0}, {first}"); a(f"s_mul_i32 s{sT0}, s{sT0}, {per*128}"); a("v_lshlrev_b32 v244, 7, v0")
        for i in range(n):
            if WDW and i==1: a("v_min_u32 v244, 0x3f80, v244")
            a(f"buffer_load_dword v248, v244, s[{sWD}:{sWD+3}], s{sT0} offen")
            if i<n-1: a(f"s_add_u32 s{sT0}, s{sT0}, 32768")
    if OPT.get('pf',2)==3: wdwarm(0,144)
    a(f"s_branch {name}_oj")
    a.label(f"{name}_spare")
    def warm(part):
        pol=OPT.get('pfp','nt') if part<2 else ''
        a(f"s_sub_u32 s{sT0}, s2, 198"); a(f"s_lshr_b32 s{sT0}, s{sT0}, 3"); a(f"v_lshl_add_u32 v244, s{sT0}, 8, v0")
        a(f"s_mul_i32 s{sT0}, s{sE}, 1152")
        if part==0:
            a("v_lshrrev_b32 v245, 1, v244"); a("v_and_b32 v244, 1, v244"); a("v_lshl_add_u32 v244, v244, 2, 2")
        elif part>=2:
            if part==3: a("v_add_u32 v244, 1792, v244")
            a("v_lshrrev_b32 v245, 2, v244"); a("v_and_b32 v244, 3, v244")
            a("v_add_u32 v247, 1, v244"); a("v_lshrrev_b32 v247, 2, v247"); a("v_lshl_add_u32 v244, v244, 1, v247"); a("v_add_u32 v244, 1, v244")
        else:
            a("v_mul_u32_u24 v245, 43691, v244"); a("v_lshrrev_b32 v245, 17, v245"); a("v_mul_u32_u24 v247, 3, v245"); a("v_sub_u32 v244, v244, v247")
            a("v_lshlrev_b32 v244, 2, v244"); a("v_min_u32 v244, 7, v244")
        a("v_mul_u32_u24 v245, 9216, v245"); a("v_lshl_add_u32 v244, v244, 7, v245")
        a(f"buffer_load_dword v248, v244, s[{sWG}:{sWG+3}], s{sT0} offen {pol}"); a(f"buffer_load_dword v249, v244, s[{sWU}:{sWU+3}], s{sT0} offen {pol}")
    PF=OPT.get('pf',2)
    if PF: warm(0)
    if PF==1: warm(1)
    stats_fin(a,0,ST,ST+1)
    a("s_barrier")
    for x in dma_setup(): a(x)
    emit_vm(dma(0,"d0"))
    if PF==3:
        a(f"v_lshlrev_b32 v10, 9, v{vLN}"); a(f"s_mov_b32 s{sT1}, {FS}")
        spin(f"{name}_ps",[f"buffer_load_dword v{VP}, v10, {WS}, s{sT1} offen sc1"],notready(0),sleep=2)
        warm(1)
        if LATE=="spare": warm(2); warm(3)
        if WDW: wdwarm(54,198)
    stamp('h')
    a.label(f"{name}_oj")
    stamp('s1')
    l1,l2=ln1("slo",True)
    for x in l1+l2: E(x)
    if PF==2:
        a("s_cmp_lt_u32 s2, 198"); a(f"s_cbranch_scc1 {name}_nw")
        warm(1)
        a.label(f"{name}_nw")
    stamp('cv0')
    stamp('cv1')
    spin(f"{name}_yc",[f"buffer_load_dwordx2 {pr(Yr)}, v{vYO}, {WS}, s{sY} offen sc1"],[f"v_cmp_eq_u32 vcc, -1, v{Yr}"],sleep=OPT.get('ysl',1))
    stamp('t0')
    a.label(f"{name}_ln")
    a(f"s_cmp_eq_u32 s{sW}, 3")
    a(f"s_cbranch_scc1 {name}_w3")
    a(f"v_add_u32 v{vS0}, {LST-LST1}, v{vS0}"); a(f"v_add_u32 v{vS1}, {LST-LST1}, v{vS1}")
    a(f"s_mov_b32 s{sT2}, 0xffff0000")
    yl=[]
    for j in range(3):
        yl.append(f"buffer_load_dwordx2 {pr(Yr+4*j)}, v{vYO}, {WS}, s{sY+j} offen sc1")
        yl.append(f"buffer_load_dwordx2 {pr(Yr+4*j+2)}, v{vYO}, {WS}, s{sY+j} offen offset:128 sc1")
    spin(f"{name}_ya",yl,[f"v_max3_u32 v{S}, v{Yr}, v{Yr+1}, v{Yr+2}",f"v_max3_u32 v{S+1}, v{Yr+3}, v{Yr+4}, v{Yr+5}",f"v_max3_u32 v{S}, v{S}, v{Yr+6}, v{Yr+7}",
         f"v_max3_u32 v{S+1}, v{S+1}, v{Yr+8}, v{Yr+9}",f"v_max3_u32 v{S}, v{S}, v{Yr+10}, v{Yr+11}",f"v_max_u32 v{S}, v{S}, v{S+1}",f"v_cmp_eq_u32 vcc, -1, v{S}"])
    stamp('y')
    unpack(a,Yv,Yr,12)
    for j in range(12): a(f"v_pk_fma_f32 {pr(H+2*j)}, {pr(H+2*j)}, {pr(Yv+2*j)}, {pr(Q+2*j)}")
    for q in range(12): a(f"v_cvt_pk_bf16_f32 v{Qr+q}, v{H+2*q}, v{H+2*q+1}")
    unpack(a,Q,Qr,12)
    sums(a,Q)
    a(f"ds_write_b64 v{vS0}, {pr(S)}")
    a("s_waitcnt lgkmcnt(0)")
    a("s_barrier")
    stats_fin(a,0,ST,ST+1)
    for j in range(3):
        for z in range(4): a(f"v_pk_fma_f32 {pr(H+8*j+2*z)}, {pr(Q+8*j+2*z)}, {pr(ST)}, {pr(ST)} op_sel:[0,1,0] op_sel_hi:[1,1,0]")
        for z in range(4): a(f"v_pk_fma_f32 {pr(H+8*j+2*z)}, {pr(H+8*j+2*z)}, {pr(MA+8*j+2*z)}, {pr(MB+8*j+2*z)}")
        for q in range(4): a(f"v_cvt_pk_bf16_f32 v{Yr+4*j+q}, v{H+8*j+2*q}, v{H+8*j+2*q+1}")
        a(f"s_add_u32 s{sT0}, s{sY+j}, {(H2-YO)&0xffffffff}")
        a(f"buffer_store_dwordx4 v[{Yr+4*j}:{Yr+4*j+3}], v{vHO}, {WS}, s{sT0} offen sc1")
    for j in range(3):
        a(f"s_add_u32 s{sT0}, s{sY+j}, {X1-YO}")
        a(f"buffer_store_dwordx2 {pr(Qr+4*j)}, v{vYO}, {WS}, s{sT0} offen sc1")
        a(f"buffer_store_dwordx2 {pr(Qr+4*j+2)}, v{vYO}, {WS}, s{sT0} offen offset:128 sc1")
    for x in pre2(): a(x)
    a("s_waitcnt vmcnt(0)")
    stamp('lnd')
    for x in flagstore(F3,0): a(x)
    a("s_barrier")
    a(f"s_branch {name}_lnj")
    a.label(f"{name}_w3")
    a(f"s_mul_i32 s{sT0}, s{sW}, {144*9216}"); a(f"v_subrev_u32 v196, s{sT0}, v{VD0}")
    a(f"s_lshl_b32 s{sT0}, s{sKPF}, 6"); a(f"v_add_u32 v196, s{sT0}, v196")
    for x in pre2(): a(x)
    NA=OPT.get('w3a',20); NB=OPT.get('w3b',20)
    spin(f"{name}_y3",[f"buffer_load_dwordx2 {pr(Yr)}, v{vYO}, {WS}, s{sY} offen sc1"],[f"v_cmp_eq_u32 vcc, -1, v{Yr}"],sleep=1)
    n=0
    for sb in range(2):
        for i in range(36):
            if n==NA: stamp('y'); a("s_barrier")
            if n==NB: stamp('lnd'); a("s_barrier")
            srd=(sWG,sWU)[sb]
            a(f"s_mov_b32 m0, {(2+sb)*SLAB+i*1024}")
            a(f"s_mov_b32 s{sT0}, {i*16*9216}")
            a(f"buffer_load_dwordx4 v196, s[{srd}:{srd+3}], s{sT0} offen {OPT.get('dmp','')} lds")
            n+=1
            if n>40 and n%8==0: a("s_waitcnt vmcnt(36)")
    assert NA<=36 and NB>=NA
    a.label(f"{name}_lnj")
    for x in pre3(): a(x)
    VTG=148
    if LATE=="w2":
        a(f"buffer_load_dword v{VJ}, v149, s[{sWG}:{sWG+3}], 0 offen"); a(f"buffer_load_dword v{VJ}, v149, s[{sWU}:{sWU+3}], 0 offen")
    a(f"s_mov_b32 s{sT1}, {F3}")
    spin(f"{name}_p3",[f"buffer_load_dword v{VP}, v{VPA}, {WS}, s{sT1} offen sc1"],notready(0))
    stamp('f3')
    def bload(sl,ks):
        v = VL if ks<4 else VOF-1+ks//4
        return f"buffer_load_dwordx4 {breg(ks*4+sl)}, v{v}, {WS}, s{sH2+sl} offen offset:{(ks%4)*1024} sc1 ; b{sl>>1}_{ks//2}"
    allb=[bload(sl,ks) for ks in range(18) for sl in (0,1)]+[bload(sl,ks) for ks in range(18) for sl in (2,3)]
    def areads(stage,t,n,sb,buf):
        L=[]
        for j in range(2):
            d=AF+buf*8+j*4
            for hf in range(2):
                L.append(f"ds_read_b64_tr_b16 {pr(d+2*hf)}, v{VA[stage*4+sb*2+t]} offset:{(2*n+j)*2048+hf*256}")
        return L
    def areads2(st,dt,buf):
        L=[]; slot=(st+2)%4
        for j in range(2):
            d=AF+buf*8+j*4
            for hf in range(2):
                L.append(f"ds_read_b64_tr_b16 {pr(d+2*hf)}, v{VA2+(slot>>1)} offset:{(slot&1)*SLAB+(32*j+16*hf)*288+32*dt}")
        return L
    def mfmas(t,n,sb,buf,slots):
        L=[]
        for sl in slots:
            acc=ACC+t*32+sb*16+sl*4
            for j in range(2):
                d=AF+buf*8+j*4
                c="0" if (n==0 and j==0) else f"v[{acc}:{acc+3}]"
                L.append(f"v_mfma_f32_16x16x32_bf16 v[{acc}:{acc+3}], v[{d}:{d+3}], {breg((2*n+j)*4+sl)}, {c}")
        return L
    def gelu(t,slots,store,e0,HP=HP):
        chains=[]
        for bi,sl in enumerate(slots):
            G=ACC+t*32+sl*4; U=G+16; last=[]
            for r in range(4):
                o1=Op(f"v_mul_f32 v{{T}}, v{G+r}, v{G+r}","V",alloc=True,earliest=e0)
                o2=Op(f"v_fma_f32 v{{T}}, v{{T}}, v{VC1}, s{sC0}","V",[o1])
                o3=Op(f"v_mul_f32 v{{T}}, v{{T}}, v{G+r}","V",[o2])
                o4=Op(f"v_exp_f32 v{{T}}, v{{T}}","T",[o3])
                o5=Op(f"v_add_f32 v{{T}}, 1.0, v{{T}}","V",[o4])
                o6=Op(f"v_rcp_f32 v{{T}}, v{{T}}","T",[o5])
                o7=Op(f"v_mul_f32 v{U+r}, v{U+r}, v{G+r}","V",[o3],earliest=e0+3)
                o8=Op(f"v_mul_f32 v{U+r}, v{U+r}, v{{T}}","V",[o6,o7],free=True)
                chains.append([o1,o2,o3,o4,o7,o5,o6,o8]); last.append(o8)
                if r&1:
                    cv=Op(f"v_cvt_pk_bf16_f32 v{HP+sl*4+2*t+(r>>1)}, v{U+r-1}, v{U+r}","V",last[-2:])
                    chains.append([cv]); last.append(cv)
            if store:
                cvs=[x for x in last if "cvt" in x.fmt]
                chains.append([Op(f"buffer_store_dwordx4 v[{HP+sl*4}:{HP+sl*4+3}], v{VH}, {WS}, s{sHS+sl} offen {OPT.get('hst','sc1')} ; hst","D",cvs)])
        return chains
    hg=[0]
    def block(stage, t, slots, nxt, chains, vms, sc_extra, bar=None, vwait=None):
        per=2*len(slots)
        mf=[]; reads={}; sc={}
        for h in range(18):
            n,sb=h//2,h%2
            buf=(hg[0]+h)%3; base=len(mf)
            mf+=mfmas(t,n,sb,buf,slots)
            if h+2<18: rl=areads(stage,t,(h+2)//2,h%2,(hg[0]+h+2)%3)
            else: rl=nxt(h-16,(hg[0]+h+2)%3)
            early = bar is not None and h==15
            for k,x in enumerate(rl):
                pos = k if (per==4 or early) else 2*k
                if per==4 and early: pos=k//2
                reads[base+pos]=(reads[base+pos]+"\n"+x) if base+pos in reads else x
            nl=len(rl) if per==8 else 3
            w=f"s_waitcnt lgkmcnt({nl})"
            if vwait and vwait(h+1): w=f"@W:{vwait(h+1)} lgkmcnt({nl})"
            if early: sc.setdefault(base+per-1,[]).extend([(f"@W:{bar} lgkmcnt(0)" if bar else "s_waitcnt lgkmcnt(0)"),"s_barrier"])
            else: sc.setdefault(base+per-1,[]).append(w)
        for g,l in sc_extra.items(): sc.setdefault(g,[]).extend(l)
        st=schedule(E,mf,reads,sc,vms,chains,TEMPS,allow_rt=(per==4))
        hg[0]+=18
        return st
    NUP=OPT.get('nup',8); NH1=OPT.get('nh1',13)
    for x in allb[:NUP]: a(x)
    a("s_barrier")
    for h in range(2):
        for x in areads(0,0,0,h,h): a(x)
    a(f"s_waitcnt vmcnt({NUP-4}) lgkmcnt(4)")
    stamp('b0')
    rest=allb[NUP:]
    ex={}
    for i,x in enumerate(rest[:36]): ex.setdefault(2*i+1 if (2*i+1)%4!=3 else 2*i,[]).append(x)
    print("h0",block(0,0,(0,1),lambda k,b: areads(0,1,0,k,b),[],[],ex,vwait=lambda h: f"b0_{h//2}" if h<18 and h%2==0 else None))
    rest=rest[36:]
    ex={}
    for i,x in enumerate(rest[:NH1]):
        g=(70*i)//NH1+1
        ex.setdefault(g if g%4!=3 else g-1,[]).append(x)
    rest=rest[NH1:]
    print("h1",block(0,1,(0,1),lambda k,b: areads(1,0,0,k,b),gelu(0,(0,1),False,2),[],ex,bar=""))
    E("@W:b1_0")
    stamp('loop')
    PACE=OPT.get('pace',12)
    def b2load(pos,sl):
        kp=PORD[pos//2]+9*(pos&1)
        v = VL if kp<4 else VOF-1+kp//4
        return (None,f"buffer_load_dwordx4 {breg2(pos*4+sl)}, v{v}, {WS}, s{sHL+sl} offen offset:{(kp%4)*1024} sc1 ; c{pos//2}")
    def dma2(st):
        return [(f"s_add_u32 m0, s{sLW}, {((st+2)%4)*SLAB+i*1024}", f"buffer_load_dwordx4 v{VDM[i]}, s[{sWD}:{sWD+3}], s{sDM+st} offen lds ; w{st}") for i in range(9)]
    sZ=sY
    a(f"s_mov_b32 s{sZ}, 0")
    def check(lb,need):
        slow.append((lb,VPB,sFA,need))
        return notready(need), [f"s_cbranch_vccnz {name}_{lb}", f"{name}_{lb}b:"]
    for m in range(1,5):
        stage=m&1; last=(m==4)
        vms=[]; ex0={}; clr=[]
        if m==1:
            vms+=[(None,x,3*i) for i,x in enumerate(rest)]
            g0=3*len(rest)+20
            if OPT.get('pfl',1)==1:
                vms+=[(None,f"buffer_load_dword v{VJ}, v149, s[{sWG}:{sWG+3}], 0 offen",g0-16),(None,f"buffer_load_dword v{VJ}, v149, s[{sWU}:{sWU+3}], 0 offen",g0-12)]
            vms+=[(p,x,g0+((214-g0)*i)//17) for i,(p,x) in enumerate(dma(0,"d2"))]
        elif not last: vms+=[(p,x,PACE*i) for i,(p,x) in enumerate(dma(stage^1,f"d{m+1}"))]
        else:
            clr=[[Op(f"v_mov_b32 v{VDM[i]}, v{VDT+i}","V")] for i in range(9)]
            for st in range(9): ex0[2*st]=[f"s_add_u32 s{sDM+st}, s{sWO}, {PORD[st]*32*1152}"]
            vms+=[(p,x,20+int(OPT.get('wp',7)*i)) for i,(p,x) in enumerate(dma2(0)+dma2(1))]
        if m<=3:
            if OPT.get('pft',0) and m>=2: vms.append((None,f"buffer_load_dword v{VJ}, v159, {WS}, s{sPO} offen offset:{(m-2)*128}",vms[-1][2]+4))
            if OPT.get('pfw',1): vms.append((None,f"buffer_load_dword v{VJ}, v{VPF}, s[{sWD}:{sWD+3}], s{sZ} offen",vms[-1][2]+4))
        v0=[v for v in vms if v[2]<144]; v1=[(p,x,g-144) for p,x,g in vms if g>=144]
        DLY=OPT.get('dly',0)
        HPo=(128,160)[(m-1)&1] if DLY else HP; HPn=(128,160)[m&1] if DLY else HP
        if DLY:
            for q_,sl in enumerate((0,1) if m==1 else (0,1,2,3)):
                v1.append((None,f"buffer_store_dwordx4 v[{HPo+sl*4}:{HPo+sl*4+3}], v{VH}, {WS}, s{sHS+sl} offen sc1 ; hst",DLY+OPT.get('dls',8)*q_))
            v1.sort(key=lambda x:x[2])
        s0=block(stage,0,(0,1,2,3),lambda k,b: areads(stage,1,0,k,b),clr+gelu(1,(0,1) if m==1 else (0,1,2,3),not DLY,2,HPo),v0,ex0,
                 vwait=(lambda h: f"b1_{h//2}" if h<18 and h%2==0 else None) if m==1 else None)
        ex={}
        if m==1:
            ex[0]=[f"s_lshl_b32 s{sT1}, s{sKPF}, 10"]; upd=[Op(f"v_add_u32 v{VH}, s{sT1}, v{VL}","V",earliest=2 if not DLY else 136)]
        else: upd=[Op(f"v_add_u32 v{VH}, 0x400, v{VH}","V",earliest=2 if not DLY else 136)]
        if not last:
            nx=lambda k,b: areads(stage^1,0,0,k,b)
            s1=block(stage,1,(0,1,2,3),nx,[upd]+gelu(0,(0,1,2,3),False,2,HPn),v1,ex,bar=f"d{m+1}")
            a(f"v_add_u32 v{VD}, 64, v{VD}")
            a(f"s_add_u32 s{sZ}, s{sZ}, 0x6c000")
            for x in flagstore(F4,m): a(x)
            if m<3: stamp(f'it{m-1}')
            else: stamp('last')
        else:
            nx=lambda k,b: areads2(0,k,b)
            ck,br=check("sl3",3)
            ex[9]=[f"buffer_load_dword v{VP}, v{VPB}, {WS}, s{sFA} offen sc1 ; p3"]
            ex[38]=["@W:p3"]+ck
            ex[40]=br+flagstore(F4,4)
            k_=0
            for pos in range(2*OPT.get('nc',2)):
                for sl in range(4):
                    v1.append(b2load(pos,sl)+(max(41+int(k_*OPT.get('cp',5.5)),(pos//2+1)*16),)); k_+=1
            s1=block(stage,1,(0,1,2,3),nx,[upd]+gelu(0,(0,1,2,3),False,2,HPn),sorted(v1,key=lambda x:x[2]),ex,bar="w1")
            a(f"v_mov_b32 v2, s{sTAG}")
            VTG=2
        print("full",m,s0,s1)
    tail=gelu(1,(0,1,2,3),True,2)
    E("@W:c0 lgkmcnt(4)")
    stamp('g2')
    def g2_stage(st,order,mf,reads,sc,nxt_order):
        for k,dt in enumerate(order):
            g=st*9+k; buf=(hg[0]+g)%3; base=len(mf)
            for sl in range(4):
                acc=ACC2[dt*4+sl]
                for j in range(2):
                    d=AF+buf*8+j*4
                    c="0" if (st==0 and j==0) else f"v[{acc}:{acc+3}]"
                    mf.append(f"v_mfma_f32_16x16x32_bf16 v[{acc}:{acc+3}], v[{d}:{d+3}], {breg2((2*st+j)*4+sl)}, {c}")
            rl=[]
            if k+2<9: rl=areads2(st,order[k+2],(hg[0]+g+2)%3)
            elif nxt_order: rl=areads2(st+1,nxt_order[k+2-9],(hg[0]+g+2)%3)
            for q,x in enumerate(rl): reads[base+2*q]=x
            nout=len(rl)
            if k==6 and 0<st<8: sc[base+7]=[f"@W:w{st+1} lgkmcnt({nout})","s_barrier"]
            elif k==8 and st<8: sc[base+7]=[f"@W:c{st+1} lgkmcnt({nout})"]
            else: sc[base+7]=[f"s_waitcnt lgkmcnt({nout})"]
    nat=list(range(9))
    mf=[]; reads={}; sc={}
    for st in range(7): g2_stage(st,nat,mf,reads,sc,nat)
    ev=[]
    P=OPT.get('g2p',4.2); NC=OPT.get('nc',2)
    cs=lambda st: [b2load(pos,sl) for pos in (2*st,2*st+1) for sl in range(4)]
    seq=[(dma2(2),0)]+([(cs(2),0)] if NC<=2 else [])
    seq+=[(dma2(3),0),(cs(3),0),(dma2(4),128),(cs(4),0),(dma2(5),200),(cs(5),"p4"),(dma2(6),272),(cs(6),0),(dma2(7),344),(cs(7),"p5"),(dma2(8),416),(cs(8),0)]
    g=0.0
    for L,e in seq:
        if e=="p4": G4=(int(g)//2)*2; g=G4+1
        elif e=="p5": G5=(int(g)//2)*2; g=G5+1
        else: g=max(g,e)
        for x in L:
            ev.append(x+(int(g),)); g+=P
    late=[x for x in ev if x[2]>=496]; ev=[x for x in ev if x[2]<496]
    vms=sorted(ev,key=lambda x:x[2])
    def addsc(g,l): sc.setdefault(g,[]).extend(l)
    for G,k,lb in ((G4,4,"sl4"),(G5,5,"sl5")):
        ck,br=check(lb,k)
        addsc(G-44,[f"buffer_load_dword v{VP}, v{VPB}, {WS}, s{sFA} offen sc1 ; p{k}"])
        addsc(G-2,[f"@W:p{k}"]+ck); addsc(G,br)
    GF5=OPT.get('gf5',220)
    addsc(GF5,["@W:hst"]+flagstore(F4,5))
    for n_ in SP:
        if n_.startswith("G") and A.STAMP: addsc(int(n_[1:]),[a.stamp_txt(SP.index(n_))])
    r=schedule(E,mf,reads,sc,vms,tail,TEMPS)
    print("g2",r,G4,G5,g); assert r['lastop']<GF5 and r['left']==0
    a(f"s_cmp_eq_u32 s{sKH}, 0")
    a(f"s_cbranch_scc1 {name}_kh0")
    def fin(keep, send, woff, roff, lb):
        nk=len(keep)
        XR=128; PK=32
        mf=[]; reads={}; sc={}
        order=send+keep
        g2_stage(7,nat,mf,reads,sc,order)
        L=[(y,x[2]-504) for x in late for y in x[:2] if y]; o=L.append
        o(f"s_mov_b32 s{sQO}, s{sOUT}"); o(f"s_and_b32 s{sQO+1}, s{sOUT+1}, 0xffff")
        o("v_and_b32 v22, 63, v0")
        o(f"s_mul_i32 s{sT0}, s{sRH}, {3*SLAB}"); o(f"v_add_u32 v16, s{sT0}, v{VL}")
        o(f"s_lshl_b32 s{sT0}, s{sRT2}, 3"); o(f"s_lshl_b32 s{sT1}, s{sRH}, 2"); o(f"s_add_u32 s{sT0}, s{sT0}, s{sT1}"); o(f"s_add_u32 s{sY}, s{sT0}, s{sKQ}")
        o("v_and_b32 v17, 15, v22"); o("v_lshrrev_b32 v18, 4, v22")
        o("v_lshlrev_b32 v19, 7, v18"); o("v_lshl_add_u32 v19, v17, 3, v19")
        o("v_lshlrev_b32 v20, 4, v18")
        o(f"s_lshl_b32 s{sT0}, s{sY}, 4"); o(f"v_add_u32 v21, s{sT0}, v17")
        o("v_mul_u32_u24 v21, 1152, v21"); o("v_lshl_add_u32 v21, v18, 3, v21")
        o("v_lshlrev_b32 v23, 3, v22")
        o(f"s_mul_i32 s{sH2}, s{sY}, 18432"); o(f"s_mul_i32 s{sT0}, s{sDS}, 4608"); o(f"s_add_u32 s{sH2}, s{sH2}, s{sT0}"); o(f"s_add_u32 s{sH2}, s{sH2}, {X1+512*keep[0]}")
        o(f"s_mul_i32 s{sH2+1}, s{sDS}, 576"); o(f"s_add_u32 s{sH2+1}, s{sH2+1}, {MODF+5*2304}")
        o(f"s_mul_i32 s{sH2+2}, s{sDS}, 288")
        for s in range(1,4):
            o(f"s_xor_b32 s{sT0}, s2, {2*s}"); o(f"s_lshl_b32 s{sT0}, s{sT0}, 2"); o(f"s_add_u32 s{sT0}, s{sT0}, s{sW}")
            o(f"s_mul_i32 s{sT0}, s{sT0}, {PSTR}"); o(f"s_add_u32 s{sHS+s}, s{sT0}, {PART+(s-1)*4096}")
        for u,dt in enumerate(keep): o(f"buffer_load_dwordx2 {pr(XR+2*u)}, v19, {WS}, s{sH2} offen offset:{512*u} sc1")
        r7=schedule_stream(E,mf,reads,sc,L)
        mf=[]; reads={}; sc={}
        g2_stage(8,order,mf,reads,sc,None)
        OV=OPT.get('ov',1)
        wr=[]
        for k,dt in enumerate(send):
            for sl in range(4):
                r_=ACC2[dt*4+sl]; wr.append((f"ds_write_b128 v16, v[{r_}:{r_+3}] offset:{woff+1024*(k*4+sl)}",8*k+12))
        sc={g:[re.sub(r"lgkmcnt\(\d+\)","lgkmcnt(@L)",x) for x in l] for g,l in sc.items()}
        def EL(txt):
            if "@L" in txt:
                ops=[l for l in view() if l.strip().startswith("ds_")]
                rd=[i for i,l in enumerate(ops) if "ds_read" in l]
                k=EL.k; EL.k+=1
                idx=rd[-1] if k>=7 else rd[-5]
                txt=txt.replace("@L",str(min(15,len(ops)-1-idx)))
            E(txt)
        EL.k=0
        r8=schedule_stream(EL,mf,reads,sc,wr if OV else [],maxv=1)
        print("fin",r7,r8)
        stamp('g2end')
        GBr=96
        for u,dt in enumerate(keep): a(f"buffer_load_dwordx4 v[{GBr+4*u}:{GBr+4*u+3}], v20, {WS}, s{sH2+1} offen offset:{64*dt} sc1")
        if not OV:
            for x,_ in wr: a(x)
        a("s_waitcnt lgkmcnt(0)")
        a("s_barrier")
        spare=[ACC2[dt*4+sl] for dt in send for sl in range(4)]+[116,120,124,140]
        order2=[(u,sl) for sl in (1,2,3,0) for u in range(nk)]
        for n,(u,sl) in enumerate(order2):
            r_=spare[n]; a(f"ds_read_b128 v[{r_}:{r_+3}], v16 offset:{roff+1024*(u*4+sl)}")
        NCH=4 if nk==5 else 3
        slot=lambda d: 4*(d//3)+d%3
        for q in range(8): a(f"v_mov_b32 v{PK+4*q+3}, s{sTAG}")
        for n,(u,sl) in enumerate(order2):
            r_=spare[n]; k=ACC2[keep[u]*4+sl]
            a(f"s_waitcnt lgkmcnt({min(15,len(order2)-1-n)})")
            a(f"v_pk_add_f32 {pr(k)}, {pr(k)}, {pr(r_)}"); a(f"v_pk_add_f32 {pr(k+2)}, {pr(k+2)}, {pr(r_+2)}")
            if sl:
                p=PK+((sl-1)&1)*16
                a(f"v_cvt_pk_bf16_f32 v{p+slot(2*u)}, v{k}, v{k+1}"); a(f"v_cvt_pk_bf16_f32 v{p+slot(2*u+1)}, v{k+2}, v{k+3}")
                if u==nk-1:
                    a(f"s_add_u32 s{sT0}, s{sPO}, {(sl-1)*4096}")
                    for c in range(NCH): a(f"buffer_store_dwordx4 v[{p+4*c}:{p+4*c+3}], v{VL}, {WS}, s{sT0} offen offset:{1024*c} sc1")
        stamp('pst')
        regs=[]; ld=[]; tags=[]
        for s in range(1,4):
            qs=spare[NCH*(s-1):NCH*s]
            for c in range(NCH): ld.append(f"buffer_load_dwordx4 v[{qs[c]}:{qs[c]+3}], v{VL}, {WS}, s{sHS+s} offen offset:{1024*c} sc1")
            regs.append([qs[d//3]+d%3 for d in range(2*nk)]); tags+=[q+3 for q in qs]
        a(f"s_mov_b32 s{sT2}, 0xffff0000")
        tmp=spare[12:12+nk]
        ck=[f"v_min3_u32 v17, v{tags[0]}, v{tags[1]}, v{tags[2]}",f"v_max3_u32 v18, v{tags[0]}, v{tags[1]}, v{tags[2]}"]
        for i in range(3,len(tags),2):
            x,y=tags[i],tags[min(i+1,len(tags)-1)]
            ck+=[f"v_min3_u32 v17, v17, v{x}, v{y}",f"v_max3_u32 v18, v18, v{x}, v{y}"]
        ck+=[f"v_xor_b32 v17, s{sTAG}, v17",f"v_xor_b32 v18, s{sTAG}, v18","v_or_b32 v17, v17, v18","v_cmp_ne_u32 vcc, 0, v17"]
        spin(lb,ld,ck)
        stamp('f5')
        for s in range(3):
            for u in range(nk):
                k=ACC2[keep[u]*4]; p0,p1=regs[s][2*u],regs[s][2*u+1]; t=tmp[u]
                a(f"v_lshlrev_b32 v{t}, 16, v{p0}"); a(f"v_and_b32 v{t+1}, s{sT2}, v{p0}")
                a(f"v_lshlrev_b32 v{t+2}, 16, v{p1}"); a(f"v_and_b32 v{t+3}, s{sT2}, v{p1}")
                a(f"v_pk_add_f32 {pr(k)}, {pr(k)}, {pr(t)}"); a(f"v_pk_add_f32 {pr(k+2)}, {pr(k+2)}, {pr(t+2)}")
        for u,dt in enumerate(keep):
            k=ACC2[dt*4]; t=tmp[u]; x=XR+2*u; gb=GBr+4*u
            a(f"v_lshlrev_b32 v{t}, 16, v{x}"); a(f"v_and_b32 v{t+1}, s{sT2}, v{x}")
            a(f"v_lshlrev_b32 v{t+2}, 16, v{x+1}"); a(f"v_and_b32 v{t+3}, s{sT2}, v{x+1}")
            a(f"v_pk_fma_f32 {pr(t)}, {pr(k)}, {pr(gb)}, {pr(t)}"); a(f"v_pk_fma_f32 {pr(t+2)}, {pr(k+2)}, {pr(gb+2)}, {pr(t+2)}")
            a(f"v_cvt_pk_bf16_f32 v{t}, v{t}, v{t+1}"); a(f"v_cvt_pk_bf16_f32 v{t+1}, v{t+2}, v{t+3}")
            a(f"buffer_store_dwordx2 {pr(t)}, v21, s[{sQO}:{sQO+3}], s{sH2+2} offen offset:{32*dt} {OPT.get('ost','')}")
        a.stamp_flush(len(SP), 16)
        a("s_endpgm")
    c0=len(a.l)
    fin([5,6,7,8],[0,1,2,3,4],16384,0,f"{name}_p5a")
    cut.append((c0,len(a.l)))
    a.label(f"{name}_kh0")
    fin([0,1,2,3,4],[5,6,7,8],0,16384,f"{name}_p5b")
    for lb,va,sa,need in slow:
        a.label(f"{name}_{lb}")
        spin(f"{name}_{lb}l",[f"buffer_load_dword v{VP}, v{va}, {WS}, s{sa} offen sc1"],notready(need),back=f"{name}_{lb}b",sleep=1 if lb in("slm","slo") else 0)
    a.label(f"{name}_end")
    a("s_endpgm")
    return kernel_desc(name, 512, 256, 86)
```

```python
TSZ=2359296
XT=0x000000; YO=0x240000; MODF=0x480000; STAT=0x484000; FLG=0x490000; H2=0x4C0000; X1=0x700000; HH=0x940000; PART=0x1B40000
HHSZ=128*144*1024
PSTR=12288
WDP=PART+1024*PSTR
WSEND=WDP+5308416
FSTR=32
F3=FLG; F4=FLG+1024*FSTR; F5=FLG+2*1024*FSTR; F6=FLG+3*1024*FSTR; FS=0x4B0000; FM=FS+256*128; EPO=FM+64*128; FLGSZ=4*1024*FSTR
SLAB=36864
```

```python
class Op:
    __slots__=("txt","kind","deps","gap","alloc","free","fmt","earliest")
    def __init__(self, fmt, kind, deps=(), alloc=False, free=False, earliest=0):
        self.fmt=fmt; self.kind=kind; self.deps=list(deps); self.gap=None; self.alloc=alloc; self.free=free; self.earliest=earliest
LAT={"V":1,"T":2,"D":1}
def schedule(a, mfmas, reads, scalars, vms, chains, temps, allow_vv_from=None, allow_rt=False, vm_patience=6, allow_rd=False, spill=None):
    N=len(mfmas)
    pend=[op for ch in chains for op in ch]
    owner={}
    for ch in chains:
        for op in ch: owner[id(op)]=ch
    treg={}
    temps=list(temps)
    vms=list(vms); lastvm=[-10]
    stats={"vv":0,"over":0,"empty":0}
    def ready(op,g):
        if op.earliest>g: return False
        for d in op.deps:
            if d.gap is None or d.gap+LAT[d.kind]>g: return False
        if op.alloc and not temps: return False
        return True
    def issue(op,g):
        ch=owner[id(op)]
        if op.alloc: treg[id(ch)]=temps.pop(0)
        a(op.fmt.format(T=treg.get(id(ch),"?")))
        if op.free: temps.append(treg.pop(id(ch)))
        op.gap=g; pend.remove(op)
    def pick(kinds,g):
        for op in pend:
            if op.kind in kinds and ready(op,g): return op
        return None
    def remaining_cost():
        return sum(2 if o.kind=="T" else 1 for o in pend)
    for g in range(N):
        a(mfmas[g])
        sc=list(scalars.get(g,[]))
        slots=2
        vm=None
        isread = g in reads
        if vms and vms[0][0] and not sc and vms[0][2]<=g+2:
            sc.append(vms[0][0]); vms[0]=(None,vms[0][1],max(vms[0][2],g+1))
        elif (allow_rd or not isread) and vms and vms[0][2]<=g and not vms[0][0]:
            t=pick("T",g) if not isread else None
            late = (g-vms[0][2] >= vm_patience) and (g-lastvm[0]>=4)
            if t is None or late: vm=vms.pop(0); lastvm[0]=g
        dop=None
        if allow_rd and isread and vm is None: dop=pick("D",g)
        if isread and (vm or dop) and not sc: sc.append("s_nop 0")
        for s in sc: a(s)
        if isread: a(reads[g]); slots-=1
        if vm: a(vm[1]); slots-=1
        if dop: issue(dop,g); slots-=1
        if slots==0: continue
        if slots==2:
            op=pick("T",g)
            if op: issue(op,g); continue
            op=pick("D",g)
            if op: issue(op,g); slots-=1
        op=pick("V",g)
        if op is None and allow_rt:
            op=pick("T",g)
            if op: stats["over"]+=1
        if op:
            issue(op,g); slots-=1
            if slots==1 and allow_vv_from is not None and g>=allow_vv_from:
                op=pick("V",g)
                if op: issue(op,g); stats["vv"]+=1
        elif slots==2: stats["empty"]+=1
    stats["lastop"]=max([o.gap for ch in chains for o in ch if o.gap is not None] or [0])
    left=list(pend)
    g=N+10
    while pend:
        op=None
        for o in pend:
            if ready(o,g): op=o; break
        assert op is not None
        issue(op,g); g+=3
    if spill is not None:
        spill.extend((p,x,0) for p,x,_ in vms); vms=[]
    for v in vms:
        if v[0]: a(v[0]); a("s_nop 0")
        a(v[1])
    stats["left"]=len(left)+len(vms)
    return stats


def kind_of(txt):
    t=txt.strip().split()[0]
    if t.startswith("@"): return "S"
    if t.endswith(":"): return "S"
    if t.startswith("s_"): return "S"
    if t.startswith(("buffer_","ds_","global_")): return "M"
    if t.startswith(("v_exp","v_rcp","v_rsq","v_mul_hi","v_mul_lo","v_log","v_sqrt")): return "T"
    return "V"

def schedule_stream(a, mfmas, reads, scalars, stream, start=0, maxv=2, pace=None):
    st=[x if isinstance(x,tuple) else (x,0) for x in stream]
    last=0
    for g,m in enumerate(mfmas):
        a(m)
        sc=list(scalars.get(g,[]))
        for s in sc: a(s)
        ok=lambda: st and g>=start and st[0][1]<=g
        if not sc and ok() and kind_of(st[0][0])=="S": a(st.pop(0)[0]); last=g
        slots=2; usedv=False
        if g in reads: a(reads[g]); slots-=1
        n=0
        while slots>0 and ok() and n<maxv:
            k=kind_of(st[0][0])
            if k=="M" and (usedv or slots<2): break
            if k=="T" and slots<2: break
            a(st.pop(0)[0]); last=g; n+=1
            slots-= 2 if k=="T" else 1
            if k in "VT": usedv=True
    left=len(st)
    for x,_ in st: a(x)
    return {"left":left,"last":last}
```

```python
import sys, json
from asmlib import *
from hazard import fix, lint
import ks_v1 as ks
def build1(path, verbose=False):
    a=A(); A.kidx=0
    d=ks.kf(a,KN)
    lint(a.l)
    vb=[]; lines,n=fix(a.l,vb)
    print(path,"instr",len(lines),"hazard nops",n)
    if verbose:
        for x in vb: print("   ",x)
    open(path,"w").write(finish([f"@launch grid=(256,1,1) block=(256,1,1) lds={ks.KS_LDS}"], "\n".join(lines)+"\n", [d]))
def variants(V, prefix="f5o"):
    for i,o in enumerate(V):
        sv=dict(ks.OPT); ks.OPT.update(o)
        A.STAMP="sp" in o; A.CYC=bool(o.get("cyc"))
        build1(f"{prefix}_x{i+1}.s")
        ks.OPT.clear(); ks.OPT.update(sv)
if __name__=="__main__":
    build1("f5o.s", verbose=len(sys.argv)>1)
    variants(json.loads(open("variants.json").read()))
```

```python
KN = "adaLN_cond__ssm_conv_h3__glu_gated_geglu__prompt_kernel"
KA = dict(q=0,k=8,v=16,shift=24,ssmk=32,ssmD=40,bx=48,wg=56,wu=64,wd=72,c=80,wmod=88,out=96,dbg=104,ws=112)
SZ = dict(q=2359296,k=2359296,v=2359296,shift=4608,ssmk=2359296,ssmD=1152,bx=2359296,wg=5308416,wu=5308416,wd=5308416,c=1152,wmod=3981312,out=2359296,dbg=256,ws=268435456)

class A:
    def __init__(self):
        self.l = []
        self.uid = 0
    def __call__(self, s=""):
        for line in s.split("\n"):
            self.l.append("    " + line.strip() if line.strip() and not line.strip().endswith(":") else line.strip())
    def label(self, name):
        self.l.append(name + ":")
    def newlabel(self, p="L"):
        self.uid += 1
        return f"{p}_{A.kidx}_{self.uid}"
    def text(self):
        return "\n".join(self.l) + "\n"
    STAMP=False
    DBG=None
    kidx=0
    CYC=False
    DIAG=None
    def stamp_txt(self, i):
        return f"{'s_memtime' if A.CYC else 's_memrealtime'} s[{86+2*i}:{87+2*i}]"
    def stamp(self, i, wait=False):
        if not A.STAMP: return
        self(self.stamp_txt(i))
        if wait: self("s_waitcnt lgkmcnt(0)")
    def stamp_flush(self, last, v=1):
        if not A.STAMP: return
        self("s_waitcnt vmcnt(0)")
        self.stamp(last)
        if A.DIAG and (A.kidx>0 or A.DIAG[1]!=-2):
            wg,ia,ib,K=A.DIAG
            if ib<0: ib=last
            lb=self.newlabel("dg")
            self("s_waitcnt lgkmcnt(0)")
            self(f"s_cmp_lg_u32 s2, {wg}"); self(f"s_cbranch_scc1 {lb}x")
            if ia==-2:
                self(f"s_load_dwordx2 s[4:5], s[0:1], {KA['ws']}"); self("s_waitcnt lgkmcnt(0)")
                self(f"s_add_u32 s4, s4, {0x8000000+wg*2304}"); self("s_addc_u32 s5, s5, 0")
                self("s_load_dword s8, s[4:5], 0"); self("s_waitcnt lgkmcnt(0)")
                ia=(8-86)//2
            self(f"s_sub_u32 s4, s{86+2*ib}, s{86+2*ia}"); self(f"s_mul_i32 s4, s4, {K}"); self("s_min_u32 s4, s4, 100000")
            self.label(lb)
            self("s_memrealtime s[6:7]"); self("s_waitcnt lgkmcnt(0)")
            self(f"s_sub_u32 s5, s6, s{86+2*last}"); self("s_cmp_lt_u32 s5, s4"); self(f"s_cbranch_scc1 {lb}")
            self.label(lb+"x")
            return
        self(f"s_load_dwordx2 s[4:5], s[0:1], {KA['ws']}")
        self("s_waitcnt lgkmcnt(0)")
        self("s_mov_b64 exec, -1")
        self(f"s_add_u32 s4, s4, {0x8000000 + A.kidx*0x200000}")
        self("s_addc_u32 s5, s5, 0")
        self("s_and_b32 s5, s5, 0xffff")
        self("s_mov_b32 s6, 0x200000")
        self("s_mov_b32 s7, 0x00020000")
        self(f"v_mov_b32 v{v}, 0")
        for j in range(last+1): self(f"v_writelane_b32 v{v}, s{86+2*j}, {j}")
        self(f"v_lshlrev_b32 v{v+1}, 2, v0")
        self("s_mul_i32 s3, s2, 2304")
        self(f"buffer_store_dword v{v}, v{v+1}, s[4:7], s3 offen sc1")
    def srd(self, s, base, size):
        self(f"s_mov_b32 s{s}, s{base}")
        self(f"s_and_b32 s{s+1}, s{base+1}, 0xffff")
        self(f"s_mov_b32 s{s+2}, {size}")
        self(f"s_mov_b32 s{s+3}, 0x00020000")

def kernel_begin(a, name):
    a.l.append(f".globl {name}")
    a.l.append(".p2align 8")
    a.l.append(f".type {name},@function")
    a.l.append(f"{name}:")

def kernel_desc(name, vgpr, accum, sgpr=102, wgy=False):
    if A.STAMP: sgpr=102
    s = f""".amdhsa_kernel {name}
  .amdhsa_next_free_vgpr {vgpr}
  .amdhsa_next_free_sgpr {sgpr}
  .amdhsa_accum_offset {accum}
  .amdhsa_group_segment_fixed_size 0
  .amdhsa_kernarg_size 120
  .amdhsa_user_sgpr_count 2
  .amdhsa_user_sgpr_kernarg_segment_ptr 1
  .amdhsa_system_sgpr_workgroup_id_x 1
"""
    if wgy: s += "  .amdhsa_system_sgpr_workgroup_id_y 1\n"
    s += "  .amdhsa_float_denorm_mode_32 3\n"
    s += ".end_amdhsa_kernel\n"
    return s

def finish(header_lines, body, descs):
    s = "".join(f"; {h}\n" for h in header_lines)
    s += '.amdgcn_target "amdgcn-amd-amdhsa--gfx950"\n.text\n'
    s += body
    s += '.section .rodata,"a"\n'
    for d in descs:
        s += ".p2align 6\n" + d
    return s
```

```python
from asmlib import *
from layout import *
from sched import Op, schedule, schedule_stream, kind_of
import struct, re
def fbits(x): return "0x%08x"%struct.unpack("<I",struct.pack("<f",x))[0]
C0=-2*1.4426950408889634*0.7978845608028654
C1=C0*0.044715
KS_LDS=163840
LST=4*SLAB; MW=2*SLAB; MSI=LST+1024; sL1=84
SPIN=400000
H2_=H2; X1_=X1
OPT=dict()
sWG,sWU,sWD,sWS,sQO=4,8,12,16,20
sW,sE,sJ,sPAR,sKPS,sKPF,sKQ,sKH,sRH,sDS=24,25,26,27,28,29,30,31,32,33
sLW,sC0=34,35
sY=36
sWO=39
sDM=40
sT0,sT1,sT2=3,49,66
sH2=50; sHS=54; sPO=58; sFA=59; sOUT=60; sHL=62
sSB=67; sRT2=68; sSP=69; sTAG=70; sEP=71; sG=72; sRB=73; sWW=75
sX=76
VA=[2,3,4,5,56,57,58,59]
VD0=6; VD=7; VH=8; VL=9; VC1=10; VP=11; VPA=12; VF=13; VA2=[14,15,144,145]; VPB=60; VPF=62; VJ=1
VDM=[56,57,58,59,61,63,6,7,12]; VDT=150
VOF=24
TEMPS=[16,17,18,19,20,21,22,23,28,29,30,31]
AF=32; ACC=64; HP=128
vN,vCL,vQO,vYO,vHO,vLN=200,201,202,203,204,205
def breg(i):
    i*=4
    return f"a[{i}:{i+3}]" if i<256 else f"v[{224+i-256}:{224+i-256+3}]"
def breg2(i):
    i*=4
    return f"a[{i}:{i+3}]" if i<256 else f"v[{96+i-256}:{96+i-256+3}]"
ACC2=list(range(64,96,4))+list(range(176,216,4))
def abuf2(buf,f): return (32+8*buf+4*f) if f<2 else (152+8*buf+4*(f-2))
PORD=[4,0,5,1,6,2,7,3,8]
WS=f"s[{sWS}:{sWS+3}]"
pr=lambda r: f"v[{r}:{r+1}]"

def kf(a, name):
    H2=XT if OPT.get('alh',1) else H2_
    X1=YO if OPT.get('alx',1) else X1_
    SP=OPT.get('sp',[])
    def stamp(n):
        if n in SP: a.stamp(SP.index(n))
    cut=[]
    def view():
        L=a.l
        for lo,hi in reversed(cut): L=L[:lo]+L[hi:]
        return L
    EXP={"b":4,"c":8,"w":9,"d":18}
    def after(pred):
        cnt=0
        for ln in reversed(view()):
            if "buffer_" in ln:
                if pred(ln): return min(cnt,63)
                cnt+=1
        raise Exception("not found")
    def E(txt):
        for t in txt.split("\n"):
            m=re.search(r"@W:(\w+)",t)
            if m:
                tag=m.group(1)
                if tag[0] in EXP and tag[1:2].isdigit() and tag!="d0":
                    n=sum(1 for l in view() if l.rstrip().endswith('; '+tag))
                    assert n==EXP[tag[0]], (tag,n)
                t=t.replace(m.group(0),f"s_waitcnt vmcnt({after(lambda l: l.rstrip().endswith('; '+tag))})")
            a(t)
    def fin_srd(s,sz,o=a):
        o(f"s_and_b32 s{s+1}, s{s+1}, 0xffff"); o(f"s_mov_b32 s{s+2}, {sz}"); o(f"s_mov_b32 s{s+3}, 0x00020000")
    def flagstore(F,val,addr=sSB):
        return [f"s_add_u32 s{sT1}, s{addr}, {F}", f"v_mov_b32 v{VF}, s{sTAG}" if val==0 else f"v_add_u32 v{VF}, {val}, v{VTG}", "s_mov_b64 exec, 1",
                f"buffer_store_dword v{VF}, off, {WS}, s{sT1} sc1", "s_mov_b64 exec, -1"]
    def notready(need,v=VP):
        return [f"v_subrev_u32 v{v}, s{sTAG}, v{v}"]+([f"v_subrev_u32 v{v}, {need}, v{v}"] if need else [])+[f"v_cmp_lt_u32 vcc, {5-need}, v{v}"]
    VTG=199
    def spin(lbl, loads, check, back=None, sleep=0):
        a(f"s_mov_b32 s{sSP}, 0")
        a.label(lbl)
        for x in loads: a(x)
        a(f"s_add_u32 s{sSP}, s{sSP}, 1")
        a("s_waitcnt vmcnt(0)")
        for x in check: a(x)
        a(f"s_cmp_ge_u32 s{sSP}, {SPIN if 's' not in OPT.get('ab','') or 'p5' not in lbl else 1}")
        a(f"s_cbranch_scc1 {lbl}x")
        if sleep:
            a(f"s_cbranch_vccz {lbl}x"); a(f"s_sleep {sleep}"); a(f"s_branch {lbl}")
        else:
            a("s_nop 1"); a(f"s_cbranch_vccnz {lbl}")
        a.label(lbl+"x")
        if back: a(f"s_branch {back}")
    def spin2(lbl, load, regs, need, gap=0):
        n=len(regs)
        a(f"s_mov_b32 s{sSP}, 0")
        for r in regs[:-1]:
            a(load(r))
            if gap: a(f"s_sleep {gap}")
        a.label(lbl)
        for k in range(n):
            a(load(regs[k-1]))
            a(f"s_add_u32 s{sSP}, s{sSP}, 1")
            a(f"s_waitcnt vmcnt({n-1})")
            for x in notready(need,regs[k]): a(x)
            a(f"s_cmp_ge_u32 s{sSP}, {SPIN}")
            a(f"s_cbranch_scc1 {lbl}x")
            a(f"s_cbranch_vccz {lbl}x")
        a(f"s_branch {lbl}")
        a.label(lbl+"x")
    def dma(stage,tag="dma"):
        L=[]
        for sb in range(2):
            srd=(sWG,sWU)[sb]
            for i in range(9):
                pre=f"s_add_u32 m0, s{sLW}, {(stage*2+sb)*SLAB+i*1024}" if i%4==0 else None
                L.append((pre,f"buffer_load_dwordx4 v{VD}, s[{srd}:{srd+3}], s{sDM+i} offen offset:{(i%4)*1024} {OPT.get('dmp','')} lds ; {tag}"))
        return L
    def emit_vm(L):
        for p,x in L:
            if p: a(p); a("s_nop 0")
            a(x)
    slow=[]
    Qr=208; ST=206; Q=132; H=156; MA=64; MB=32; MC=220; Yr=88; Yv=100; S=180; vS0,vS1,vMO=196,197,198
    def reduce3(o):
        for z in range(2): o(f"v_add_f32 v{S+z}, v{S+z}, v{S+z} row_ror:8")
        for pl in ("v_permlane16_swap_b32","v_permlane32_swap_b32"):
            for z in range(2): o(f"v_mov_b32 v{S+2+z}, v{S+z}")
            for z in range(2): o(f"{pl} v{S+z}, v{S+2+z}")
            o(f"v_pk_add_f32 {pr(S)}, {pr(S)}, {pr(S+2)}")
    def sums(o,src):
        o(f"v_pk_add_f32 {pr(S)}, {pr(src)}, {pr(src+2)}"); o(f"v_pk_mul_f32 {pr(S+2)}, {pr(src)}, {pr(src)}"); o(f"v_pk_mul_f32 {pr(S+4)}, {pr(src+2)}, {pr(src+2)}")
        for j in range(2,12):
            o(f"v_pk_add_f32 {pr(S)}, {pr(S)}, {pr(src+2*j)}"); k=S+2+2*(j&1); o(f"v_pk_fma_f32 {pr(k)}, {pr(src+2*j)}, {pr(src+2*j)}, {pr(k)}")
        o(f"v_pk_add_f32 {pr(S+2)}, {pr(S+2)}, {pr(S+4)}")
        o(f"v_add_f32 v{S}, v{S}, v{S+1}"); o(f"v_add_f32 v{S+1}, v{S+2}, v{S+3}")
        reduce3(o)
    def stats_fin(o,off,d0,d1):
        for w in range(3): o(f"ds_read_b64 {pr(S+4+2*w)}, v{vS1} offset:{off+64*w}")
        o(f"s_mov_b32 s{sT0}, 0x3ae38e39")
        o("s_waitcnt lgkmcnt(0)")
        o(f"v_pk_add_f32 {pr(S+4)}, {pr(S+4)}, {pr(S+6)}"); o(f"v_pk_add_f32 {pr(S+4)}, {pr(S+4)}, {pr(S+8)}")
        o(f"v_mul_f32 v{d0}, s{sT0}, v{S+4}"); o(f"v_mul_f32 v{d1}, s{sT0}, v{S+5}")
        o(f"v_fma_f32 v{d1}, -v{d0}, v{d0}, v{d1}"); o(f"v_max_f32 v{d1}, 0, v{d1}"); o(f"v_add_f32 v{d1}, 0x3727c5ac, v{d1}")
        o(f"v_rsq_f32 v{d1}, v{d1}"); o(f"v_mul_f32 v{d0}, -1.0, v{d0}"); o(f"v_mul_f32 v{d0}, v{d0}, v{d1}")
    def unpack(o,dst,src,n):
        for q in range(n):
            o(f"v_lshlrev_b32 v{dst+2*q}, 16, v{src+q}"); o(f"v_and_b32 v{dst+2*q+1}, s{sT2}, v{src+q}")
    def dma_setup():
        L=[]; o=L.append
        o(f"s_and_b32 s{sPAR}, s{sDS}, 1")
        o(f"s_lshr_b32 s{sT0}, s{sDS}, 1"); o(f"s_mul_i32 s{sT0}, s{sT0}, 9"); o(f"s_mul_i32 s{sT1}, s{sE}, 18"); o(f"s_add_u32 s{sT0}, s{sT0}, s{sT1}")
        o(f"s_add_u32 s{sKPS}, s{sT0}, 4"); o(f"s_mul_i32 s{sT1}, s{sPAR}, 5"); o(f"s_add_u32 s{sKPF}, s{sT0}, s{sT1}")
        o(f"v_lshrrev_b32 v244, 2, v{vLN}"); o(f"s_mul_i32 s{sT0}, s{sW}, 144"); o(f"v_add_u32 v244, s{sT0}, v244")
        o("v_mul_u32_u24 v244, 9216, v244")
        o(f"v_lshrrev_b32 v245, 4, v{vLN}"); o("v_and_b32 v245, 2, v245"); o(f"v_and_b32 v247, 3, v{vLN}"); o("v_xor_b32 v245, v245, v247")
        o(f"v_lshl_add_u32 v{VD0}, v245, 4, v244")
        o(f"s_lshl_b32 s{sT0}, s{sKPS}, 6"); o(f"v_add_u32 v{VD}, s{sT0}, v{VD0}")
        for i in range(9): o(f"s_mov_b32 s{sDM+i}, {i*16*9216-(i%4)*1024}")
        o(f"s_mul_i32 s{sLW}, s{sW}, 9216")
        return L
    def ln1(lb,packed):
        L=[]; o=L.append
        o(f"v_min_u32 v244, 53, v{vLN}"); o("v_lshlrev_b32 v246, 7, v244"); o(f"s_mov_b32 s{sFA}, {FM}")
        o(f"buffer_load_dword v{VP}, v246, {WS}, s{sFA} offen sc1 ; pm")
        for j in range(12 if packed else 24):
            o(f"v_pk_fma_f32 {pr(H+2*j)}, {pr(Q+2*j)}, {pr(ST)}, {pr(ST)} op_sel:[0,1,0] op_sel_hi:[1,1,0]" if packed else f"v_fma_f32 v{H+j}, v{Q+j}, v{ST+1}, v{ST}")
        o("@W:pm")
        for x in notready(0): o(x)
        o("s_nop 1"); o(f"s_cbranch_vccnz {name}_{lb}\n{name}_{lb}b:")
        slow.append((lb,246,sFA,0))
        def modld(v,dst,tag):
            o(f"s_mov_b32 s{sT1}, {MODF+v*2304}")
            for j in range(3):
                for hh in range(2): o(f"buffer_load_dwordx4 v[{dst+8*j+4*hh}:{dst+8*j+4*hh+3}], v{vMO}, {WS}, s{sT1} offen offset:{768*j+16*hh} sc1 ; {tag}")
        modld(1,MA,"m1"); modld(0,MB,"m0"); modld(2,MC,"m2")
        L2=[]; o=L2.append
        o("@W:m0")
        for j in range(12 if packed else 24):
            o(f"v_pk_fma_f32 {pr(H+2*j)}, {pr(H+2*j)}, {pr(MA+2*j)}, {pr(MB+2*j)}" if packed else f"v_fma_f32 v{H+j}, v{H+j}, v{MA+j}, v{MB+j}")
        modld(4,MA,"m4"); modld(3,MB,"m3")
        o("@W:m2")
        for j in range(12 if packed else 24):
            o(f"v_pk_mul_f32 {pr(H+2*j)}, {pr(H+2*j)}, {pr(MC+2*j)}" if packed else f"v_mul_f32 v{H+j}, v{H+j}, v{MC+j}")
        return L,L2
    def pre2():
        L=[]; o=L.append
        o(f"v_min_u32 v244, 23, v{vLN}")
        o("v_mul_u32_u24 v245, 43691, v244"); o("v_lshrrev_b32 v245, 17, v245")
        o("v_mul_u32_u24 v247, 3, v245"); o("v_sub_u32 v244, v244, v247")
        o(f"s_lshl_b32 s{sT0}, s{sW}, 3"); o(f"v_add_u32 v245, s{sT0}, v245")
        o("v_and_b32 v247, 3, v245"); o("v_lshrrev_b32 v245, 2, v245")
        o(f"s_and_b32 s{sT0}, s{sJ}, 28"); o(f"v_add_u32 v247, s{sT0}, v247")
        o("v_lshl_add_u32 v245, v247, 3, v245"); o("v_lshl_add_u32 v245, v245, 2, v244")
        o(f"v_mul_u32_u24 v{VPA}, {FSTR}, v245")
        o(f"s_lshr_b32 s{sT0}, s{sJ}, 2"); o(f"s_lshl_b32 s{sT0}, s{sT0}, 4")
        o(f"s_lshl_b32 s{sT1}, s{sW}, 2"); o(f"s_add_u32 s{sT0}, s{sT0}, s{sT1}")
        o(f"s_lshl_b32 s{sT1}, s{sPAR}, 1")
        for sl in range(4):
            o(f"s_xor_b32 s{sT2}, s{sT1}, {sl}"); o(f"s_add_u32 s{sT2}, s{sT2}, s{sT0}")
            o(f"s_mul_i32 s{sH2+sl}, s{sT2}, 18432"); o(f"s_add_u32 s{sH2+sl}, s{sH2+sl}, {H2}")
            o(f"s_mul_i32 s{sHS+sl}, s{sT2}, 147456"); o(f"s_add_u32 s{sHS+sl}, s{sHS+sl}, {HH}")
        o(f"v_lshrrev_b32 v244, 4, v{vLN}"); o(f"v_bfe_u32 v245, v{vLN}, 2, 2")
        o("v_lshl_add_u32 v245, v244, 3, v245"); o("v_lshlrev_b32 v245, 6, v245")
        o(f"v_and_b32 v247, 3, v{vLN}"); o("v_lshl_add_u32 v245, v247, 3, v245"); o("v_and_b32 v244, 1, v244")
        o(f"v_lshl_add_u32 v{VA[0]}, v244, 5, v245"); o(f"v_xor_b32 v{VA[1]}, 32, v{VA[0]}")
        for k in range(1,4):
            for t in range(2): o(f"v_add_u32 v{VA[2*k+t]}, {k*SLAB}, v{VA[t]}")
        o(f"v_mov_b32 v{VC1}, {fbits(C1)}"); o(f"s_mov_b32 s{sC0}, {fbits(C0)}")
        for j in range(1,5): o(f"v_add_u32 v{VOF-1+j}, {4096*j}, v{VL}")
        o(f"s_lshl_b32 s{sT0}, s{sKPS}, 10"); o(f"v_add_u32 v{VH}, s{sT0}, v{VL}")
        o(f"s_lshl_b32 s{sT0}, s{sKPF}, 6"); o(f"s_add_u32 s{sT0}, s{sT0}, 64"); o(f"v_add_u32 v{VD}, s{sT0}, v{VD0}")
        return L
    def pre3():
        L=[]; o=L.append
        o(f"s_and_b32 s{sT0}, s{sJ}, 28"); o(f"s_add_u32 s{sT0}, s{sT0}, s{sW}"); o(f"s_mul_i32 s{sT0}, s{sT0}, 54")
        o(f"v_min_u32 v247, 53, v{vLN}"); o(f"v_add_u32 v247, s{sT0}, v247")
        o("v_mul_u32_u24 v244, 43691, v247"); o("v_lshrrev_b32 v244, 17, v244")
        o("v_mul_u32_u24 v245, 3, v244"); o("v_sub_u32 v247, v247, v245")
        o("v_mul_u32_u24 v244, 9216, v244"); o("v_lshl_add_u32 v247, v247, 7, v244")
        o(f"s_min_u32 s{sT0}, s{sKPS}, s{sKPF}"); o(f"s_lshr_b32 s{sT0}, s{sT0}, 1"); o(f"s_lshl_b32 s{sT0}, s{sT0}, 7")
        o(f"v_add_u32 v149, s{sT0}, v247")
        o(f"s_lshr_b32 s{sKQ}, s{sE}, 1")
        o(f"s_lshr_b32 s{sRH}, s{sW}, 1")
        o(f"s_and_b32 s{sT0}, s{sE}, 1"); o(f"s_lshl_b32 s{sT0}, s{sT0}, 3")
        o(f"s_lshr_b32 s{sT1}, s{sJ}, 2"); o(f"s_add_u32 s{sRT2}, s{sT0}, s{sT1}")
        o(f"s_lshl_b32 s{sT0}, s{sRT2}, 3"); o(f"s_lshl_b32 s{sT1}, s{sW}, 1"); o(f"s_add_u32 s{sKH}, s{sT0}, s{sT1}")
        o(f"s_mul_i32 s{sT0}, s{sKH}, 147456"); o(f"s_mul_i32 s{sT1}, s{sKQ}, {36*1024}"); o(f"s_add_u32 s{sT0}, s{sT0}, s{sT1}")
        for kh in range(2):
            for sg in range(2): o(f"s_add_u32 s{sHL+2*kh+sg}, s{sT0}, {HH+sg*147456+kh*18432}")
        o(f"s_mul_i32 s{sWO}, s{sKQ}, {1152*1152}"); o(f"s_mul_i32 s{sT0}, s{sW}, {9*32*1152}"); o(f"s_add_u32 s{sWW}, s{sWO}, s{sT0}")
        o(f"s_mov_b32 s{sT1}, 238609295"); o(f"s_mul_i32 s{sT2}, s{sDS}, 288"); o(f"s_lshl_b32 s{sT0}, s{sKQ}, 2")
        for i in range(9):
            o(f"v_add_u32 v244, {64*i}, v{vLN}"); o(f"v_mul_hi_u32 v245, v244, s{sT1}")
            o("v_mul_u32_u24 v246, 18, v245"); o("v_sub_u32 v244, v244, v246")
            o(f"v_xor_b32 v246, s{sT0}, v244"); o("v_cmp_gt_u32 vcc, 16, v244"); o("v_mul_u32_u24 v245, 1152, v245")
            o("s_nop 0"); o("v_cndmask_b32 v244, v244, v246, vcc")
            o("v_lshl_add_u32 v245, v244, 4, v245"); o(f"v_add_u32 v{VDT+i}, s{sT2}, v245")
        o(f"s_lshl_b32 s{sT0}, s{sJ}, 2"); o(f"s_add_u32 s{sT0}, s{sT0}, s{sW}"); o(f"s_mul_i32 s{sT0}, s{sT0}, {27*128}"); o(f"s_add_u32 s{sT0}, s{sT0}, s{sWO}")
        o(f"v_min_u32 v244, 26, v{vLN}"); o(f"v_lshl_add_u32 v{VPF}, v244, 7, s{sT0}")
        o(f"v_lshrrev_b32 v244, 2, v{vLN}"); o("v_mul_u32_u24 v244, 288, v244"); o(f"v_and_b32 v245, 3, v{vLN}"); o("v_lshl_add_u32 v244, v245, 3, v244")
        for k in range(4): o(f"v_add_u32 v{VA2[k]}, {k*SLAB}, v244")
        o(f"v_and_b32 v244, 3, v{vLN}")
        o(f"s_lshr_b32 s{sT0}, s{sRT2}, 1"); o(f"s_lshl_b32 s{sT0}, s{sT0}, 2"); o(f"v_add_u32 v245, s{sT0}, v244")
        o(f"v_bfe_u32 v244, v{vLN}, 2, 1"); o(f"s_lshl_b32 s{sT0}, s{sKQ}, 1"); o(f"v_add_u32 v244, s{sT0}, v244"); o("v_lshl_add_u32 v245, v245, 3, v244")
        o(f"s_and_b32 s{sT0}, s{sRT2}, 1"); o(f"s_lshl_b32 s{sT0}, s{sT0}, 1"); o(f"s_add_u32 s{sT0}, s{sT0}, s{sRH}")
        o(f"v_lshl_add_u32 v245, v245, 2, s{sT0}")
        o(f"s_mov_b32 s{sFA}, {F4}"); o(f"v_mul_u32_u24 v{VPB}, {FSTR}, v245")
        o(f"s_and_b32 s{sT0}, s{sJ}, 28"); o(f"s_add_u32 s{sT0}, s{sT0}, s{sW}"); o(f"s_mul_i32 s{sT0}, s{sT0}, 18")
        o(f"v_min_u32 v244, 17, v{vLN}"); o(f"v_add_u32 v244, s{sT0}, v244"); o("v_mul_u32_u24 v244, 9216, v244")
        o(f"s_lshl_b32 s{sT0}, s{sKPF}, 6"); o(f"v_add_u32 v146, s{sT0}, v244")
        o(f"v_mov_b32 v148, s{sTAG}")
        o(f"v_min_u32 v159, 47, v{vLN}"); o("v_lshlrev_b32 v159, 8, v159")
        return L

    HL=220; HE=OPT.get('he',0)
    def hloads(guard):
        lb=a.newlabel(f"{name}_nh")
        if guard: a("s_cmp_ge_u32 s2, 144"); a(f"s_cbranch_scc1 {lb}")
        a(f"s_mul_i32 s{sT1}, s{sE}, 18"); a(f"s_add_u32 s{sT1}, s{sT1}, s{sJ}"); a(f"s_lshl_b32 s{sT1}, s{sT1}, 2"); a(f"s_add_u32 s74, s{sT1}, s{sW}")
        a(f"s_lshl_b32 s{sT1}, s74, 12")
        a(f"s_add_u32 s{sX}, s52, s{sT1}"); a(f"s_addc_u32 s{sX+1}, s53, 0"); fin_srd(sX,4096)
        a(f"v_lshlrev_b32 v250, 4, v{vLN}"); a(f"v_subrev_u32 v251, 16, v250")
        for i in range(4):
            a(f"buffer_load_dwordx4 v[{HL+6*i}:{HL+6*i+3}], v250, s[{sX}:{sX+3}], 0 offen offset:{1024*i} {OPT.get('hld','')}")
            a(f"buffer_load_dword v{HL+6*i+4}, v250, s[{sX}:{sX+3}], 0 offen offset:{1024*i+16} {OPT.get('hld','')}")
        a(f"buffer_load_dword v{HL+28}, v251, s[{sX}:{sX+3}], 0 offen")
        a(f"s_mov_b32 s{sX+4}, s54"); a(f"s_mov_b32 s{sX+5}, s55"); fin_srd(sX+4,SZ['ssmD'])
        a(f"s_lshl_b32 s{sT1}, s74, 1")
        a(f"buffer_load_ushort v{HL+29}, off, s[{sX+4}:{sX+7}], s{sT1}")
        a.label(lb)
    kernel_begin(a, name)
    a("s_cmp_ge_u32 s2, 256")
    a(f"s_cbranch_scc1 {name}_end")
    stamp('start')
    a(f"s_load_dwordx4 s[40:43], s[0:1], {KA['k']}")
    a(f"s_load_dwordx2 s[44:45], s[0:1], {KA['shift']}")
    a(f"s_load_dwordx2 s[{sWS}:{sWS+1}], s[0:1], {KA['ws']}")
    a(f"s_load_dwordx2 s[{sQO}:{sQO+1}], s[0:1], {KA['q']}")
    a("s_cmp_ge_u32 s2, 144")
    a(f"s_cselect_b32 s{sT0}, {KA['c']}, {KA['ssmk']}")
    a(f"s_load_dwordx4 s[52:55], s[0:1], s{sT0}")
    a(f"s_load_dwordx2 s[{sWG}:{sWG+1}], s[0:1], {KA['wg']}")
    a(f"s_load_dwordx2 s[{sWU}:{sWU+1}], s[0:1], {KA['wu']}")
    a(f"s_load_dwordx2 s[{sWD}:{sWD+1}], s[0:1], {KA['wd']}")
    a(f"s_load_dwordx2 s[{sOUT}:{sOUT+1}], s[0:1], {KA['out']}")
    a(f"s_and_b32 s{sE}, s2, 7"); a(f"s_lshr_b32 s{sJ}, s2, 3")
    if OPT.get('cpf',1):
        a(f"s_getpc_b64 s[46:47]")
        a.label(f"{name}_pc")
        a(f"v_lshl_add_u32 v2, v0, 5, s{sJ}"); a("v_lshlrev_b32 v2, 7, v2")
        a(f"v_min_u32 v2, {name}_end-{name}_pc, v2")
        a("v_mov_b32 v3, s47"); a("v_add_co_u32 v2, vcc, s46, v2"); a("v_addc_co_u32 v3, vcc, 0, v3, vcc")
        a("global_load_dword v192, v[2:3], off")
    a("v_lshrrev_b32 v1, 6, v0")
    a(f"v_readfirstlane_b32 s{sW}, v1")
    a(f"s_and_b32 s{sDS}, s{sJ}, 3")
    a(f"s_lshl_b32 s{sT0}, s{sE}, 2"); a(f"s_add_u32 s{sT0}, s{sT0}, s{sDS}")
    a(f"s_lshr_b32 s{sT1}, s{sJ}, 2"); a(f"s_lshl_b32 s{sT1}, s{sT1}, 5"); a(f"s_add_u32 s{sRB}, s{sT0}, s{sT1}")
    a(f"s_mul_i32 s{sT2}, s{sRB}, 9216")
    a("s_cmp_ge_u32 s2, 144"); a(f"s_cselect_b32 s{sL1}, {LST}, 0")
    a(f"v_and_b32 v{vLN}, 63, v0"); a(f"v_lshlrev_b32 v{VL}, 4, v{vLN}")
    a(f"s_cmp_eq_u32 s{sW}, 3")
    a(f"s_cbranch_scc1 {name}_e3")
    a("v_cmp_gt_u32 vcc, 0x90, v0")
    a("v_mov_b32 v2, 0x7ff00000")
    a(f"v_lshl_add_u32 v5, v0, 3, s{sT2}")
    a(f"v_lshl_add_u32 v8, v0, 6, s{sT2}")
    a("v_cndmask_b32 v5, v2, v5, vcc"); a("v_cndmask_b32 v8, v2, v8, vcc")
    a("v_subrev_u32 v6, 3456, v5"); a("v_lshlrev_b32 v7, 5, v0")
    a(f"v_and_b32 v{vN}, 7, v0"); a(f"v_lshrrev_b32 v{vCL}, 3, v0")
    a(f"v_mul_u32_u24 v{vQO}, 1152, v{vN}"); a(f"v_lshl_add_u32 v{vQO}, v{vCL}, 4, v{vQO}")
    a("s_mov_b32 s46, 4608")
    a("s_waitcnt lgkmcnt(0)")
    LD=OPT.get('ld','')
    a(f"s_mov_b32 s{sX}, s40"); a(f"s_mov_b32 s{sX+1}, s41"); fin_srd(sX,SZ['k'])
    K=12; V=34; W=52
    for i in range(3): a(f"buffer_load_dwordx2 {pr(K+2*i)}, v6, s[{sX}:{sX+3}], 0 offen offset:{i*1152} {LD}")
    for r in range(8): a(f"buffer_load_dwordx2 {pr(K+6+2*r)}, v5, s[{sX}:{sX+3}], {'0' if r<4 else 's46'} offen offset:{(r%4)*1152} {LD}")
    a(f"s_mov_b32 s{sX+4}, s44"); a(f"s_mov_b32 s{sX+5}, s45"); fin_srd(sX+4,SZ['shift'])
    a(f"buffer_load_dwordx4 v[{W}:{W+3}], v7, s[{sX+4}:{sX+7}], 0 offen")
    a(f"buffer_load_dwordx4 v[{W+4}:{W+7}], v7, s[{sX+4}:{sX+7}], 0 offen offset:16 ; kk")
    a("s_mov_b32 s40, s42"); a("s_mov_b32 s41, s43"); fin_srd(40,SZ['v'])
    for r in range(8): a(f"buffer_load_dwordx2 {pr(V+2*r)}, v5, s[40:43], {'0' if r<4 else 's46'} offen offset:{(r%4)*1152} {LD} ; vv")
    fin_srd(sWS,WSEND); fin_srd(sQO,SZ['q'])
    a(f"s_mov_b32 s{sT0}, {EPO}")
    a(f"buffer_load_dword v{VTG}, off, {WS}, s{sT0} sc1 ; ep")
    for j in range(3): a(f"buffer_load_dwordx4 v[{Qr+4*j}:{Qr+4*j+3}], v{vQO}, s[{sQO}:{sQO+3}], s{sT2} offen offset:{384*j} {LD} ; q")
    for s_,sz in ((sWG,SZ['wg']),(sWU,SZ['wu']),(sWD,SZ['wd'])): fin_srd(s_,sz)
    a("v_add_u32 v9, 16, v8"); a("v_add_u32 v10, 32, v8"); a("v_add_u32 v11, 48, v8")
    a(f"s_mov_b32 s{sT2}, 0xffff0000")
    KF=60; WF=82; O=90; T=106; P=140
    E("@W:kk")
    stamp('k')
    for hp in range(2):
        for j in range(4):
            for c in range(2):
                src=W+4*hp+2*c+(j>>1)
                a(f"v_and_b32 v{WF+2*j+c}, s{sT2}, v{src}" if j&1 else f"v_lshlrev_b32 v{WF+2*j+c}, 16, v{src}")
        for i in range(11):
            a(f"v_lshlrev_b32 v{KF+2*i}, 16, v{K+2*i+hp}"); a(f"v_and_b32 v{KF+2*i+1}, s{sT2}, v{K+2*i+hp}")
        for r in range(8): a(f"v_pk_mul_f32 {pr(O+2*r)}, {pr(KF+2*r)}, {pr(WF+6)}")
        for j in (2,1,0):
            for r in range(8): a(f"v_pk_fma_f32 {pr(O+2*r)}, {pr(KF+2*(r+3-j))}, {pr(WF+2*j)}, {pr(O+2*r)}")
        if hp==0:
            E("@W:vv")
            if HE: hloads(True)
        for r in range(8):
            a(f"v_lshlrev_b32 v{T+2*r}, 16, v{V+2*r+hp}"); a(f"v_and_b32 v{T+2*r+1}, s{sT2}, v{V+2*r+hp}")
        for r in range(8): a(f"v_pk_mul_f32 {pr(O+2*r)}, {pr(O+2*r)}, {pr(T+2*r)}")
        for c in range(2):
            for q in range(4): a(f"v_cvt_pk_bf16_f32 v{P+8*hp+4*c+q}, v{O+2*(7-2*q)+c}, v{O+2*(6-2*q)+c}")
    def sw(op,x,y):
        for q in range(4): a(f"{op} v{P+4*x+q}, v{P+4*y+q}")
        a(f"{op} v{8+x}, v{8+y}")
    sw("v_permlane32_swap_b32",0,2); sw("v_permlane32_swap_b32",1,3)
    sw("v_permlane16_swap_b32",0,1); sw("v_permlane16_swap_b32",2,3)
    assert XT==0
    for x in range(4): a(f"buffer_store_dwordx4 v[{P+4*x}:{P+4*x+3}], v{8+x}, {WS}, 0 offen sc1 ; xt")
    a(f"v_lshlrev_b32 v{VL}, 4, v{vLN}")
    stamp('xt')
    a(f"s_lshl_b32 s{sT0}, s{sW}, 6"); a(f"s_add_u32 s{sT0}, s{sT0}, s{sL1}")
    a(f"v_lshl_add_u32 v{vS0}, v{vN}, 3, s{sT0}")
    a("s_waitcnt vmcnt(4)" if not HE else "s_waitcnt vmcnt(4)")
    unpack(a,Q,Qr,12)
    sums(a,Q)
    a(f"ds_write_b64 v{vS0}, {pr(S)}")
    a(f"s_branch {name}_ej")
    c0=len(a.l)
    a.label(f"{name}_e3")
    for i in range(4): a(f"v_mov_b32 v{12+i}, -1")
    a(f"v_and_b32 v{vN}, 7, v0"); a(f"v_lshrrev_b32 v{vCL}, 3, v0")
    a(f"s_add_u32 s{sT2}, s{sT2}, {YO}")
    a("s_waitcnt lgkmcnt(0)")
    fin_srd(sWS,WSEND)
    a(f"s_mov_b32 s{sT0}, {EPO}")
    a(f"buffer_load_dword v{VTG}, off, {WS}, s{sT0} sc1")
    for reg in [0]+([H2-YO] if OPT.get('h2s') else []):
        a(f"s_add_u32 s{sT0}, s{sT2}, {reg}")
        for i in range(9):
            if i and i%4==0: a(f"s_add_u32 s{sT0}, s{sT0}, 4096")
            a(f"buffer_store_dwordx4 v[12:15], v{VL}, {WS}, s{sT0} offen offset:{(i%4)*1024} sc1")
    for s_,sz in ((sQO,SZ['q']),(sWG,SZ['wg']),(sWU,SZ['wu']),(sWD,SZ['wd'])): fin_srd(s_,sz)
    if HE: hloads(True)
    if OPT.get('pfm',0):
        a(f"s_load_dwordx2 s[40:41], s[0:1], {KA['wmod']}")
        a(f"s_lshl_b32 s{sT0}, s{sJ}, 7"); a(f"v_add_u32 v3, s{sT0}, v{vLN}")
        for i in range(2):
            if i: a("v_add_u32 v3, 64, v3")
            a("v_mul_u32_u24 v4, 7282, v3"); a("v_lshrrev_b32 v4, 22, v4")
            a("v_mul_u32_u24 v5, 576, v4"); a("v_sub_u32 v5, v3, v5"); a("v_mul_u32_u24 v5, 6912, v5")
            a(f"v_lshl_add_u32 v4, v4, 3, s{sE}"); a("v_min_u32 v4, 53, v4"); a(f"v_lshl_add_u32 v{6+i}, v4, 7, v5")
    a(f"s_sub_u32 s{sG}, s2, 144"); a(f"s_cmp_ge_u32 s{sG}, 54")
    a(f"s_cbranch_scc1 {name}_e3x")
    a(f"s_mov_b32 s{sX}, s52"); a(f"s_mov_b32 s{sX+1}, s53"); fin_srd(sX,SZ['c'])
    a(f"v_lshlrev_b32 v2, 2, v{vLN}")
    for i in range(5): a(f"buffer_load_dword v{16+i}, v2, s[{sX}:{sX+3}], 0 offen offset:{256*i}")
    a("s_waitcnt vmcnt(0)")
    a(f"s_mov_b32 s{sT2}, 0xffff0000"); a(f"s_mov_b32 s{sT1}, 0xbfb8aa3b")
    a(f"v_add_u32 v21, {MSI}, v2")
    unpack(a,22,16,5)
    for i in range(10): a(f"v_mul_f32 v{32+i}, s{sT1}, v{22+i}")
    for i in range(10): a(f"v_exp_f32 v{32+i}, v{32+i}")
    for i in range(10): a(f"v_add_f32 v{32+i}, 1.0, v{32+i}")
    for i in range(10): a(f"v_rcp_f32 v{32+i}, v{32+i}")
    for i in range(10): a(f"v_mul_f32 v{22+i}, v{22+i}, v{32+i}")
    for i in range(5):
        a(f"v_cvt_pk_bf16_f32 v{16+i}, v{22+2*i}, v{23+2*i}")
        a(f"ds_write_b32 v21, v{16+i} offset:{256*i}")
    a.label(f"{name}_e3x")
    if OPT.get('pfm',0):
        a("s_waitcnt vmcnt(0) lgkmcnt(0)")
        fin_srd(40,SZ['wmod'])
        for i in range(2): a(f"buffer_load_dword v{194+i}, v{6+i}, s[40:43], 0 offen {OPT.get('pfmp','')}")
        a(f"s_branch {name}_ej2")
    a.label(f"{name}_ej")
    a("s_waitcnt vmcnt(0)")
    a.label(f"{name}_ej2")
    a(f"v_readfirstlane_b32 s{sEP}, v{VTG}")
    a(f"s_lshr_b32 s{sT0}, s{sRB}, 1"); a(f"s_mul_i32 s{sT0}, s{sT0}, 18432")
    for j in range(3): a(f"s_add_u32 s{sY+j}, s{sT0}, {YO+6144*j}")
    a(f"s_and_b32 s{sT0}, s{sRB}, 1"); a(f"s_lshl_b32 s{sT0}, s{sT0}, 3"); a(f"v_add_u32 v244, s{sT0}, v{vN}")
    a(f"v_lshlrev_b32 v245, 8, v{vCL}")
    a(f"v_lshl_add_u32 v{vHO}, v244, 4, v245"); a(f"v_lshl_add_u32 v{vYO}, v244, 3, v245")
    a(f"v_lshlrev_b32 v{vMO}, 5, v{vCL}")
    a(f"v_lshl_add_u32 v{vS1}, v{vN}, 3, s{sL1}")
    a(f"s_lshl_b32 s{sT0}, s2, 2"); a(f"s_add_u32 s{sT0}, s{sT0}, s{sW}")
    a(f"s_mul_i32 s{sSB}, s{sT0}, {FSTR}")
    a(f"s_mul_i32 s{sPO}, s{sT0}, {PSTR}"); a(f"s_add_u32 s{sPO}, s{sPO}, {PART}")
    a("s_waitcnt lgkmcnt(0)")
    a("s_barrier")
    a(f"s_mul_i32 s{sTAG}, s{sEP}, 0x9E3779B1"); a(f"s_add_u32 s{sTAG}, s{sTAG}, 0x7F4A7C15")
    a(f"s_lshl_b32 s{sG}, s{sRB}, 7")
    a(f"s_cmp_lg_u32 s{sW}, 0")
    a(f"s_cbranch_scc1 {name}_nf")
    for x in flagstore(FS,0,sG): a(x)
    a.label(f"{name}_nf")
    stamp('fs')
    a("s_cmp_ge_u32 s2, 144")
    a(f"s_cbranch_scc1 {name}_oth")
    CS=4160; XS=4640; CB=KS_LDS-8*CS-4*XS; XB=CB+8*CS; STG=CB
    vX,vS=250,255; vHb=[251,252,253,254]
    a(f"s_mul_i32 s{sG}, s{sE}, 18"); a(f"s_add_u32 s{sG}, s{sG}, s{sJ}")
    a(f"s_lshl_b32 s{sT0}, s{sG}, 2")
    XL=16
    if not HE: hloads(False)
    a("v_lshrrev_b32 v3, 2, v0"); a("v_and_b32 v4, 3, v0")
    a("v_mul_u32_u24 v5, 9216, v3"); a(f"v_add_u32 v8, s{sT0}, v4"); a("v_lshl_add_u32 v5, v8, 4, v5")
    a(f"v_mul_u32_u24 v8, {XS}, v4"); a("v_lshl_add_u32 v8, v3, 4, v8"); a(f"v_add_u32 v8, {XB+512}, v8")
    a(f"v_and_b32 v2, 15, v{vLN}"); a(f"v_lshrrev_b32 v15, 4, v{vLN}")
    a(f"s_lshl_b32 s{sT0}, s{sW}, 4"); a(f"v_lshl_add_u32 v10, v15, 6, s{sT0}"); a("v_add_u32 v10, v10, v2"); a("v_lshlrev_b32 v10, 7, v10")
    stats_fin(a,0,ST,ST+1)
    for x in dma_setup(): a(x)
    for i in range(4): a(f"v_mov_b32 v{HL+24+i}, 0")
    a(f"s_mul_i32 s{sT0}, s{sW}, {XS}"); a(f"s_add_u32 s{sT0}, s{sT0}, {XB}")
    a(f"v_add_u32 v12, s{sT0}, v{VL}")
    a("s_mov_b32 exec_hi, 0")
    a(f"ds_write_b128 v12, v[{HL+24}:{HL+27}]")
    a("s_mov_b64 exec, -1")
    a(f"s_mul_i32 s{sT1}, s{sW}, {2*CS}"); a(f"s_add_u32 s{sT1}, s{sT1}, {CB}")
    a(f"v_add_u32 v13, s{sT1}, v{VL}")
    a("v_lshlrev_b32 v3, 1, v2"); a("v_sub_u32 v3, v3, v15"); a("v_add_u32 v3, 5, v3")
    a(f"v_lshl_add_u32 v{vX}, v3, 4, s{sT0}")
    a("v_add_u32 v4, 1, v2"); a("v_and_b32 v3, 1, v4"); a("v_sub_u32 v4, v4, v3")
    a("v_lshl_add_u32 v4, v15, 3, v4"); a("v_lshlrev_b32 v4, 1, v4")
    a(f"v_mul_u32_u24 v3, {CS}, v3")
    a(f"v_add3_u32 v{vHb[0]}, v4, v3, s{sT1}")
    for k in range(1,4): a(f"v_add_u32 v{vHb[k]}, {1024*k}, v{vHb[0]}")
    a("v_lshlrev_b32 v12, 9, v15"); a("v_lshl_add_u32 v12, v2, 3, v12")
    a(f"s_lshl_b32 s{sT0}, s{sW}, 1"); a(f"s_add_u32 s{sT0}, s{sT0}, {STG}")
    a(f"v_add_u32 v{vS}, s{sT0}, v12")
    a("v_lshl_add_u32 v3, v15, 3, v2"); a("v_sub_u32 v3, 15, v3")
    a("v_and_b32 v1, 1, v3"); a("v_lshlrev_b32 v1, 4, v1"); a("v_ashrrev_i32 v3, 1, v3")
    for q in range(4): a(f"v_cmp_eq_u32 s[{50+2*q}:{51+2*q}], {q}, v3")
    T=72
    def copies(base, off, tset):
        t=T+tset*4
        a(f"ds_write_b128 v13, v[{base}:{base+3}] offset:{off}")
        for q in range(4): a(f"v_alignbit_b32 v{t+q}, v{base+q+1}, v{base+q}, 16")
        a(f"ds_write_b128 v13, v[{t}:{t+3}] offset:{off+CS}")
    for i in range(4):
        a(f"s_waitcnt vmcnt({8-2*i})")
        if i==0: stamp('h')
        copies(HL+6*i, 32+1024*i, i)
    a("s_waitcnt vmcnt(0)")
    a("s_mov_b64 exec, 3")
    copies(HL+24, 0, 4)
    a("s_mov_b64 exec, -1")
    DF=96
    a(f"v_lshlrev_b32 v1, v1, v{HL+29}")
    for q in range(4): a(f"v_cndmask_b32 v{DF+q}, 0, v1, s[{50+2*q}:{51+2*q}]")
    G0=OPT.get('g0',0); LC=OPT.get('late','')=="conv"
    if LC:
        a(f"s_lshl_b32 s{sT0}, s{sJ}, 2"); a(f"s_add_u32 s{sT0}, s{sT0}, s{sW}"); a(f"s_lshl_b32 s{sT0}, s{sT0}, 5")
        a(f"v_and_b32 v244, 31, v{vLN}"); a(f"v_add_u32 v244, s{sT0}, v244")
        a("v_lshrrev_b32 v245, 2, v244"); a("v_and_b32 v244, 3, v244")
        a("v_add_u32 v247, 1, v244"); a("v_lshrrev_b32 v247, 2, v247"); a("v_lshl_add_u32 v244, v244, 1, v247"); a("v_add_u32 v244, 1, v244")
        a("v_mul_u32_u24 v245, 9216, v245"); a("v_lshl_add_u32 v249, v244, 7, v245")
        a(f"s_mul_i32 s{sT0}, s{sE}, 1152"); a(f"v_add_u32 v249, s{sT0}, v249")
    emit_vm(dma(0,"d0")[:G0])
    a(f"s_mov_b32 s{sT1}, {FS}")
    if OPT.get('pp1',0): spin2(f"{name}_p1",lambda r: f"buffer_load_dword v{r}, v10, {WS}, s{sT1} offen sc1",[192,193,194][:OPT['pp1']],0,2)
    else: spin(f"{name}_p1",[f"buffer_load_dword v{VP}, v10, {WS}, s{sT1} offen sc1"],notready(0))
    stamp('s1')
    for i in range(4):
        a(f"s_mov_b32 s{sT0}, {XT+i*64*9216}")
        a(f"buffer_load_dwordx4 v[{XL+4*i}:{XL+4*i+3}], v5, {WS}, s{sT0} offen sc1")
    for i in range(4):
        a(f"s_waitcnt vmcnt({3-i})")
        a(f"ds_write_b128 v8, v[{XL+4*i}:{XL+4*i+3}] offset:{1024*i}")
    a("s_waitcnt lgkmcnt(0)")
    a("s_barrier")
    stamp('cv0')
    CA=100
    def xreg(buf,w): return f"a[{64*buf+4*w}:{64*buf+4*w+3}]"
    def hreg(buf,u,half=None):
        b=64*buf+32+4*u
        return f"a[{b}:{b+3}]" if half is None else f"a[{b+2*half}:{b+2*half+1}]"
    def creads(p):
        buf=p&1; L=[]
        for z in range(8):
            L.append(f"ds_read_b128 {xreg(buf,7-z)}, v{vX} offset:{512*(7-z)+64*(7-p)}")
            o0=128*(z&1)+16*p
            L.append(f"ds_read2_b32 {hreg(buf,z,0)}, v{vHb[z>>1]} offset0:{o0} offset1:{o0+1}")
            L.append(f"ds_read2_b32 {hreg(buf,z,1)}, v{vHb[z>>1]} offset0:{o0+2} offset1:{o0+3}")
        return L
    for x in creads(0): a(x)
    a(f"s_or_b32 s{sT0}, s2, s{sW}"); a(f"s_cmp_lg_u32 s{sT0}, 0")
    a(f"s_cbranch_scc1 {name}_ne")
    a(f"s_add_u32 s{sT0}, s{sEP}, 1"); a(f"v_mov_b32 v{VF}, s{sT0}"); a(f"s_mov_b32 s{sT0}, {EPO}")
    a("s_mov_b64 exec, 1"); a(f"buffer_store_dword v{VF}, off, {WS}, s{sT0} sc1"); a("s_mov_b64 exec, -1")
    a.label(f"{name}_ne")
    a("s_waitcnt lgkmcnt(0)")
    mf=[]; reads={}; sc={}
    for p in range(8):
        buf=p&1; base=len(mf)
        if p==0:
            for c in range(8): mf.append(f"v_mfma_f32_16x16x32_bf16 v[{CA+4*c}:{CA+4*c+3}], {xreg(0,c)}, v[{DF}:{DF+3}], 0")
        for c in range(7,-1,-1):
            for u in range(c+1):
                acc=f"v[{CA+4*c}:{CA+4*c+3}]"
                mf.append(f"v_mfma_f32_16x16x32_bf16 {acc}, {xreg(buf,c-u)}, {hreg(buf,u)}, {acc}")
        if p<7:
            for k,x in enumerate(creads(p+1)): reads[base+k]=x
            sc[len(mf)-1]=["s_waitcnt lgkmcnt(0)"]
    D0=OPT.get('d0',0 if not LC else 150); D1=OPT.get('d1',10)
    merged=[]
    if LC: merged+=[(f"buffer_load_dword v248, v249, s[{sWG}:{sWG+3}], 0 offen",OPT.get('lcg',0)),(f"buffer_load_dword v248, v249, s[{sWU}:{sWU+3}], 0 offen",OPT.get('lcg',0))]
    assert G0 in (0,4,8,9,13,18)
    for i,(p,x) in enumerate(dma(0,"d0")[G0:]):
        if p: merged.append((p,D0+D1*i))
        merged.append((x,D0+D1*i))
    E1=OPT.get('e1',1)
    if E1:
        gl=merged[-1][1]+D1
        merged+=[(f"s_lshl_b32 s{sT0}, s{sKPF}, 6",gl-4),(f"v_add_u32 v{VD}, s{sT0}, v{VD0}",gl-4)]
        for i,(p,x) in enumerate(dma(1,"d0")[:9]):
            if p: merged.append((p,gl+D1*i))
            merged.append((x,gl+D1*i))
    LNIN=OPT.get('lnin',0)
    l1,l2=ln1("slm",not LNIN)
    if not LNIN:
        merged+=[(x,OPT.get('lg1',270)) for x in l1[:4]]
        merged.sort(key=lambda x:x[1])
    else:
        G1=OPT.get('lg1',120)
        stream=[(x,G1) for x in l1]+[(x,G1+60) for x in l2]
        vm=merged; merged=[]; est=G1; k=0
        for x,g in stream:
            est=max(est,g)
            while k<len(vm) and vm[k][1]<=est: merged.append(vm[k]); k+=1
            merged.append((x,g)); est+=1.15
        merged+=vm[k:]
        l1=l2=[]
    print("conv",schedule_stream(E,mf,reads,sc,merged))
    stamp('cv1')
    a("s_barrier")
    EP=180
    for c in range(7,-1,-1):
        a(f"v_cvt_pk_bf16_f32 v{EP+2*c}, v{CA+4*c}, v{CA+4*c+1}")
        a(f"v_cvt_pk_bf16_f32 v{EP+1+2*c}, v{CA+4*c+2}, v{CA+4*c+3}")
        a(f"ds_write_b16 v{vS}, v{EP+2*c} offset:{2048*c}")
        a(f"ds_write_b16_d16_hi v{vS}, v{EP+2*c} offset:{2048*c+128}")
        a(f"ds_write_b16 v{vS}, v{EP+1+2*c} offset:{2048*c+256}")
        a(f"ds_write_b16_d16_hi v{vS}, v{EP+1+2*c} offset:{2048*c+384}")
    a("v_lshlrev_b32 v244, 4, v0"); a(f"v_add_u32 v244, {STG}, v244")
    a(f"v_mul_u32_u24 v245, 18432, v{vCL}"); a(f"v_lshl_add_u32 v245, v{vN}, 4, v245")
    a(f"s_lshl_b32 s{sT0}, s{sG}, 7"); a(f"v_add_u32 v245, s{sT0}, v245")
    a("s_waitcnt lgkmcnt(0)")
    a("s_barrier")
    for i in range(4): a(f"ds_read_b128 v[{CA+4*i}:{CA+3+4*i}], v244 offset:{4096*i}")
    for i in range(4):
        a(f"s_mov_b32 s{sT0}, {YO+i*32*18432}")
        a(f"s_waitcnt lgkmcnt({3-i})")
        for q in range(4): a(f"v_min_u32 v{CA+4*i+q}, 0xfffffffe, v{CA+4*i+q}")
        a(f"buffer_store_dwordx4 v[{CA+4*i}:{CA+3+4*i}], v245, {WS}, s{sT0} offen sc1")
    stamp('t0')
    for x in l1[4:]+l2: E(x)
    a(f"s_branch {name}_ln")
    a.label(f"{name}_oth")
    a("s_cmp_ge_u32 s2, 198")
    a(f"s_cbranch_scc1 {name}_spare")
    a(f"s_mov_b32 s{sX+4}, s54"); a(f"s_mov_b32 s{sX+5}, s55"); fin_srd(sX+4,SZ['wmod'])
    a(f"v_lshrrev_b32 v3, 3, v{vLN}"); a(f"s_mul_i32 s{sT0}, s{sW}, 144"); a(f"v_add_u32 v4, s{sT0}, v3"); a("v_mul_u32_u24 v4, 6912, v4")
    a("v_and_b32 v3, 2, v3"); a(f"v_and_b32 v5, 7, v{vLN}"); a("v_xor_b32 v3, v3, v5")
    a(f"s_sub_u32 s{sT0}, s2, 144"); a(f"s_lshl_b32 s{sT0}, s{sT0}, 7")
    a("v_lshl_add_u32 v5, v3, 4, v4"); a(f"v_add_u32 v5, s{sT0}, v5")
    a("v_xor_b32 v3, 4, v3"); a("v_lshl_add_u32 v4, v3, 4, v4"); a(f"v_add_u32 v4, s{sT0}, v4")
    a(f"s_mul_i32 s{sT1}, s{sW}, 18432")
    for i in range(18):
        a(f"s_add_u32 m0, s{sT1}, {MW+i*1024}"); a(f"s_mov_b32 s{sT0}, {i*8*6912}")
        a(f"buffer_load_dwordx4 v{4 if i&1 else 5}, s[{sX+4}:{sX+7}], s{sT0} offen {LD} lds")
    for x in dma_setup(): a(x)
    emit_vm(dma(0,"d0"))
    stats_fin(a,0,ST,ST+1)
    a(f"v_lshrrev_b32 v2, 4, v{vLN}"); a(f"v_bfe_u32 v3, v{vLN}, 2, 2")
    a("v_lshl_add_u32 v4, v2, 3, v3"); a("v_lshlrev_b32 v4, 7, v4")
    a("v_lshrrev_b32 v3, 1, v3"); a("v_and_b32 v5, 1, v2"); a("v_lshl_add_u32 v3, v5, 1, v3")
    a(f"v_xor_b32 v3, s{sW}, v3"); a("v_lshl_add_u32 v4, v3, 5, v4")
    a(f"v_and_b32 v3, 3, v{vLN}"); a("v_lshl_add_u32 v4, v3, 3, v4"); a(f"v_add_u32 v4, {MW}, v4")
    a(f"v_add_u32 v5, {9*4096}, v4")
    a(f"v_lshlrev_b32 v8, 4, v2"); a(f"v_add_u32 v8, {MSI}, v8")
    a("s_waitcnt vmcnt(18)")
    a("s_barrier")
    stamp('h')
    for ks_ in range(18):
        a(f"ds_read_b128 v[{32+4*ks_}:{35+4*ks_}], v8 offset:{64*ks_}")
        for hf in range(2): a(f"ds_read_b64_tr_b16 a[{4*ks_+2*hf}:{4*ks_+2*hf+1}], v{4 if ks_<9 else 5} offset:{(ks_%9)*4096+hf*512}")
        if ks_>=3:
            k_=ks_-3
            a("s_waitcnt lgkmcnt(9)")
            a(f"v_mfma_f32_16x16x32_bf16 v[12:15], a[{4*k_}:{4*k_+3}], v[{32+4*k_}:{35+4*k_}], {'0' if k_==0 else 'v[12:15]'}")
    for k_ in range(15,18):
        a(f"s_waitcnt lgkmcnt({3*(17-k_)})")
        a(f"v_mfma_f32_16x16x32_bf16 v[12:15], a[{4*k_}:{4*k_+3}], v[{32+4*k_}:{35+4*k_}], v[12:15]")
    a(f"s_sub_u32 s{sG}, s2, 144")
    a(f"s_sub_u32 s{sT0}, s{sG}, 9"); a(f"s_cmp_lt_u32 s{sT0}, 9"); a(f"s_cselect_b32 s{sT1}, 1.0, 0")
    a(f"s_sub_u32 s{sT0}, s{sG}, 36"); a(f"s_cmp_lt_u32 s{sT0}, 9"); a(f"s_cselect_b32 s{sT1}, 1.0, s{sT1}")
    a(f"s_lshl_b32 s{sT0}, s{sG}, 8"); a(f"s_lshl_b32 s{sT2}, s{sW}, 6"); a(f"s_add_u32 s{sT0}, s{sT0}, s{sT2}"); a(f"s_add_u32 s{sT0}, s{sT0}, {MODF}")
    a("v_lshlrev_b32 v4, 4, v2")
    for q in range(4): a(f"v_cvt_pk_bf16_f32 v{12+q}, v{12+q}, v{12+q}")
    for q in range(4): a(f"v_lshlrev_b32 v{12+q}, 16, v{12+q}")
    for q in range(4): a(f"v_add_f32 v{12+q}, s{sT1}, v{12+q}")
    for q in range(4): a(f"v_cvt_pk_bf16_f32 v{12+q}, v{12+q}, v{12+q}")
    for q in range(4): a(f"v_lshlrev_b32 v{12+q}, 16, v{12+q}")
    a("s_mov_b32 exec_lo, 0x00010001"); a("s_mov_b32 exec_hi, 0x00010001")
    a(f"buffer_store_dwordx4 v[12:15], v4, {WS}, s{sT0} offen sc1")
    a("s_mov_b64 exec, -1")
    a(f"s_lshl_b32 s{sG}, s{sG}, 7")
    a("s_waitcnt vmcnt(0)")
    a("s_barrier")
    a(f"s_cmp_lg_u32 s{sW}, 0")
    a(f"s_cbranch_scc1 {name}_mx")
    for x in flagstore(FM,0,sG): a(x)
    a.label(f"{name}_mx")
    LATE=OPT.get('late',''); WDW=OPT.get('wdw',-1)
    def wdwarm(first,base):
        per,n=(768,3) if not WDW else (384,2)
        a(f"s_sub_u32 s{sT0}, s2, {base-first*0}"); a(f"s_add_u32 s{sT0}, s{sT0}, {first}"); a(f"s_mul_i32 s{sT0}, s{sT0}, {per*128}"); a("v_lshlrev_b32 v244, 7, v0")
        for i in range(n):
            if WDW and i==1: a("v_min_u32 v244, 0x3f80, v244")
            a(f"buffer_load_dword v248, v244, s[{sWD}:{sWD+3}], s{sT0} offen")
            if i<n-1: a(f"s_add_u32 s{sT0}, s{sT0}, 32768")
    if OPT.get('pf',3)==3 and WDW>=0: wdwarm(0,144)
    a(f"s_branch {name}_oj")
    a.label(f"{name}_spare")
    def warm(part):
        pol=OPT.get('pfp','') if part<2 else ''
        a(f"s_sub_u32 s{sT0}, s2, 198"); a(f"s_lshr_b32 s{sT0}, s{sT0}, 3"); a(f"v_lshl_add_u32 v244, s{sT0}, 8, v0")
        a(f"s_mul_i32 s{sT0}, s{sE}, 1152")
        if part==0:
            a("v_lshrrev_b32 v245, 1, v244"); a("v_and_b32 v244, 1, v244"); a("v_lshl_add_u32 v244, v244, 2, 2")
        elif part>=2:
            if part==3: a("v_add_u32 v244, 1792, v244")
            a("v_lshrrev_b32 v245, 2, v244"); a("v_and_b32 v244, 3, v244")
            a("v_add_u32 v247, 1, v244"); a("v_lshrrev_b32 v247, 2, v247"); a("v_lshl_add_u32 v244, v244, 1, v247"); a("v_add_u32 v244, 1, v244")
        else:
            a("v_mul_u32_u24 v245, 43691, v244"); a("v_lshrrev_b32 v245, 17, v245"); a("v_mul_u32_u24 v247, 3, v245"); a("v_sub_u32 v244, v244, v247")
            a("v_lshlrev_b32 v244, 2, v244"); a("v_min_u32 v244, 7, v244")
        a("v_mul_u32_u24 v245, 9216, v245"); a("v_lshl_add_u32 v244, v244, 7, v245")
        a(f"buffer_load_dword v248, v244, s[{sWG}:{sWG+3}], s{sT0} offen {pol}"); a(f"buffer_load_dword v249, v244, s[{sWU}:{sWU+3}], s{sT0} offen {pol}")
    PF=OPT.get('pf',3)
    if PF: warm(0)
    if PF==1: warm(1)
    stats_fin(a,0,ST,ST+1)
    for x in dma_setup(): a(x)
    emit_vm(dma(0,"d0"))
    if PF==3:
        a(f"v_lshlrev_b32 v10, 9, v{vLN}"); a(f"s_mov_b32 s{sT1}, {FS}")
        spin(f"{name}_ps",[f"buffer_load_dword v{VP}, v10, {WS}, s{sT1} offen sc1"],notready(0),sleep=2)
        warm(1)
        if LATE=="spare": warm(2); warm(3)
        if WDW>0: wdwarm(54,198)
    stamp('h')
    a.label(f"{name}_oj")
    stamp('s1')
    if E1:
        a(f"s_lshl_b32 s{sT0}, s{sKPF}, 6"); a(f"v_add_u32 v{VD}, s{sT0}, v{VD0}")
        a("s_waitcnt vmcnt(30)")
        emit_vm(dma(1,"d0"))
    l1,l2=ln1("slo",True)
    for x in l1+l2: E(x)
    if PF==2:
        a("s_cmp_lt_u32 s2, 198"); a(f"s_cbranch_scc1 {name}_nw")
        warm(1)
        if LATE=="spare": warm(2); warm(3)
        a.label(f"{name}_nw")
    stamp('cv0')
    stamp('cv1')
    spin(f"{name}_yc",[f"buffer_load_dwordx2 {pr(Yr)}, v{vYO}, {WS}, s{sY} offen sc1"],[f"v_cmp_eq_u32 vcc, -1, v{Yr}"],sleep=OPT.get('ysl',1))
    stamp('t0')
    a.label(f"{name}_ln")
    a(f"s_cmp_eq_u32 s{sW}, 3")
    a(f"s_cbranch_scc1 {name}_w3")
    a(f"s_sub_u32 s{sT0}, {LST+256}, s{sL1}"); a(f"v_add_u32 v{vS0}, s{sT0}, v{vS0}"); a(f"v_add_u32 v{vS1}, s{sT0}, v{vS1}")
    a(f"s_mov_b32 s{sT2}, 0xffff0000")
    yl=[]
    for j in range(3):
        yl.append(f"buffer_load_dwordx2 {pr(Yr+4*j)}, v{vYO}, {WS}, s{sY+j} offen sc1")
        yl.append(f"buffer_load_dwordx2 {pr(Yr+4*j+2)}, v{vYO}, {WS}, s{sY+j} offen offset:128 sc1")
    spin(f"{name}_ya",yl,[f"v_max3_u32 v{S}, v{Yr}, v{Yr+1}, v{Yr+2}",f"v_max3_u32 v{S+1}, v{Yr+3}, v{Yr+4}, v{Yr+5}",f"v_max3_u32 v{S}, v{S}, v{Yr+6}, v{Yr+7}",
         f"v_max3_u32 v{S+1}, v{S+1}, v{Yr+8}, v{Yr+9}",f"v_max3_u32 v{S}, v{S}, v{Yr+10}, v{Yr+11}",f"v_max_u32 v{S}, v{S}, v{S+1}",f"v_cmp_eq_u32 vcc, -1, v{S}"])
    stamp('y')
    unpack(a,Yv,Yr,12)
    for j in range(12): a(f"v_pk_fma_f32 {pr(H+2*j)}, {pr(H+2*j)}, {pr(Yv+2*j)}, {pr(Q+2*j)}")
    for q in range(12): a(f"v_cvt_pk_bf16_f32 v{Qr+q}, v{H+2*q}, v{H+2*q+1}")
    unpack(a,Q,Qr,12)
    sums(a,Q)
    a(f"ds_write_b64 v{vS0}, {pr(S)}")
    a("s_waitcnt lgkmcnt(0)")
    a("s_barrier")
    stats_fin(a,0,ST,ST+1)
    for j in range(3):
        for z in range(4): a(f"v_pk_fma_f32 {pr(H+8*j+2*z)}, {pr(Q+8*j+2*z)}, {pr(ST)}, {pr(ST)} op_sel:[0,1,0] op_sel_hi:[1,1,0]")
        for z in range(4): a(f"v_pk_fma_f32 {pr(H+8*j+2*z)}, {pr(H+8*j+2*z)}, {pr(MA+8*j+2*z)}, {pr(MB+8*j+2*z)}")
        for q in range(4): a(f"v_cvt_pk_bf16_f32 v{Yr+4*j+q}, v{H+8*j+2*q}, v{H+8*j+2*q+1}")
        a(f"s_add_u32 s{sT0}, s{sY+j}, {(H2-YO)&0xffffffff}")
        a(f"buffer_store_dwordx4 v[{Yr+4*j}:{Yr+4*j+3}], v{vHO}, {WS}, s{sT0} offen sc1")
    for j in range(3):
        a(f"s_add_u32 s{sT0}, s{sY+j}, {X1-YO}")
        a(f"buffer_store_dwordx2 {pr(Qr+4*j)}, v{vYO}, {WS}, s{sT0} offen sc1")
        a(f"buffer_store_dwordx2 {pr(Qr+4*j+2)}, v{vYO}, {WS}, s{sT0} offen offset:128 sc1")
    for x in pre2(): a(x)
    a("s_waitcnt vmcnt(0)")
    stamp('lnd')
    for x in flagstore(F3,0): a(x)
    a("s_barrier")
    a(f"s_branch {name}_lnj")
    a.label(f"{name}_w3")
    a(f"s_mul_i32 s{sT0}, s{sW}, {144*9216}"); a(f"v_subrev_u32 v196, s{sT0}, v{VD0}")
    a(f"s_lshl_b32 s{sT0}, s{sKPF}, 6"); a(f"v_add_u32 v196, s{sT0}, v196")
    for x in pre2(): a(x)
    NA=OPT.get('w3a',20); NB=OPT.get('w3b',20)
    if E1:
        NA=0; NB=OPT.get('w3b',0)
        a("s_cmp_lt_u32 s2, 144"); a(f"s_cbranch_scc1 {name}_w3c")
        stamp('y'); a("s_barrier"); stamp('lnd'); a("s_barrier")
        a(f"s_branch {name}_lnj")
        a.label(f"{name}_w3c")
    else: spin(f"{name}_y3",[f"buffer_load_dwordx2 {pr(Yr)}, v{vYO}, {WS}, s{sY} offen sc1"],[f"v_cmp_eq_u32 vcc, -1, v{Yr}"],sleep=1)
    n=0
    for sb in range(E1,2):
        for i in range(36):
            if n==NA: stamp('y'); a("s_barrier")
            if n==NB: stamp('lnd'); a("s_barrier")
            srd=(sWG,sWU)[sb]
            a(f"s_mov_b32 m0, {(2+sb)*SLAB+i*1024}")
            a(f"s_mov_b32 s{sT0}, {i*16*9216}")
            a(f"buffer_load_dwordx4 v196, s[{srd}:{srd+3}], s{sT0} offen {OPT.get('dmp','')} lds")
            n+=1
            if n>24 and n%8==0: a("s_waitcnt vmcnt(36)")
    assert NA<=36 and NB>=NA
    a.label(f"{name}_lnj")
    for x in pre3(): a(x)
    VTG=148
    if LATE=="w2":
        a(f"buffer_load_dword v{VJ}, v149, s[{sWG}:{sWG+3}], 0 offen"); a(f"buffer_load_dword v{VJ}, v149, s[{sWU}:{sWU+3}], 0 offen")
    a(f"s_mov_b32 s{sT1}, {F3}")
    if OPT.get('pp3',0): spin2(f"{name}_p3",lambda r: f"buffer_load_dword v{r}, v{VPA}, {WS}, s{sT1} offen sc1",[160,161,162][:OPT['pp3']],0,2)
    else: spin(f"{name}_p3",[f"buffer_load_dword v{VP}, v{VPA}, {WS}, s{sT1} offen sc1"],notready(0))
    stamp('f3')
    def bload(sl,ks):
        v = VL if ks<4 else VOF-1+ks//4
        return f"buffer_load_dwordx4 {breg(ks*4+sl)}, v{v}, {WS}, s{sH2+sl} offen offset:{(ks%4)*1024} sc1 ; b{sl>>1}_{ks//2}"
    allb=[bload(sl,ks) for ks in range(18) for sl in (0,1)]+[bload(sl,ks) for ks in range(18) for sl in (2,3)]
    def areads(stage,t,n,sb,buf):
        L=[]
        for j in range(2):
            d=AF+buf*8+j*4
            for hf in range(2):
                L.append(f"ds_read_b64_tr_b16 {pr(d+2*hf)}, v{VA[stage*4+sb*2+t]} offset:{(2*n+j)*2048+hf*256}")
        return L
    def areads2(st,dt,buf):
        L=[]; slot=(st+2)%4
        for f in range(4):
            for hf in range(2):
                L.append(f"ds_read_b64_tr_b16 {pr(abuf2(buf,f)+2*hf)}, v{VA2[slot]} offset:{f*9216+16*hf*288+32*dt}")
        return L
    def mfmas(t,n,sb,buf,slots):
        L=[]
        for sl in slots:
            acc=ACC+t*32+sb*16+sl*4
            for j in range(2):
                d=AF+buf*8+j*4
                c="0" if (n==0 and j==0) else f"v[{acc}:{acc+3}]"
                L.append(f"v_mfma_f32_16x16x32_bf16 v[{acc}:{acc+3}], v[{d}:{d+3}], {breg((2*n+j)*4+sl)}, {c}")
        return L
    def gelu(t,slots,store,e0,HP=HP):
        chains=[]
        for bi,sl in enumerate(slots):
            G=ACC+t*32+sl*4; U=G+16; last=[]
            for r in range(4):
                o1=Op(f"v_mul_f32 v{{T}}, v{G+r}, v{G+r}","V",alloc=True,earliest=e0)
                o2=Op(f"v_fma_f32 v{{T}}, v{{T}}, v{VC1}, s{sC0}","V",[o1])
                o3=Op(f"v_mul_f32 v{{T}}, v{{T}}, v{G+r}","V",[o2])
                o4=Op(f"v_exp_f32 v{{T}}, v{{T}}","T",[o3])
                o5=Op(f"v_add_f32 v{{T}}, 1.0, v{{T}}","V",[o4])
                o6=Op(f"v_rcp_f32 v{{T}}, v{{T}}","T",[o5])
                o7=Op(f"v_mul_f32 v{U+r}, v{U+r}, v{G+r}","V",[o3],earliest=e0+3)
                o8=Op(f"v_mul_f32 v{U+r}, v{U+r}, v{{T}}","V",[o6,o7],free=True)
                chains.append([o1,o2,o3,o4,o7,o5,o6,o8]); last.append(o8)
                if r&1:
                    cv=Op(f"v_cvt_pk_bf16_f32 v{HP+sl*4+2*t+(r>>1)}, v{U+r-1}, v{U+r}","V",last[-2:])
                    chains.append([cv]); last.append(cv)
            if store:
                cvs=[x for x in last if "cvt" in x.fmt]
                chains.append([Op(f"buffer_store_dwordx4 v[{HP+sl*4}:{HP+sl*4+3}], v{VH}, {WS}, s{sHS+sl} offen {OPT.get('hst','sc1')} ; hst","D",cvs)])
        return chains
    hg=[0]
    def block(stage, t, slots, nxt, chains, vms, sc_extra, bar=None, vwait=None, vv=None):
        per=2*len(slots)
        mf=[]; reads={}; sc={}
        for h in range(18):
            n,sb=h//2,h%2
            buf=(hg[0]+h)%3; base=len(mf)
            mf+=mfmas(t,n,sb,buf,slots)
            if h+2<18: rl=areads(stage,t,(h+2)//2,h%2,(hg[0]+h+2)%3)
            else: rl=nxt(h-16,(hg[0]+h+2)%3)
            early = bar is not None and h==15
            for k,x in enumerate(rl):
                pos = k if (per==4 or early or len(rl)==8) else 2*k
                if per==4 and early: pos=k//2
                reads[base+pos]=(reads[base+pos]+"\n"+x) if base+pos in reads else x
            nl=(len(rl) if len(rl)<8 else 7) if per==8 else 3
            w=f"s_waitcnt lgkmcnt({nl})"
            if vwait and vwait(h+1): w=f"@W:{vwait(h+1)} lgkmcnt({nl})"
            if early: sc.setdefault(base+per-1,[]).extend([(f"@W:{bar} lgkmcnt(0)" if bar else "s_waitcnt lgkmcnt(0)"),"s_barrier"])
            else: sc.setdefault(base+per-1,[]).append(w)
        for g,l in sc_extra.items(): sc.setdefault(g,[]).extend(l)
        st=schedule(E,mf,reads,sc,vms,chains,TEMPS,allow_rt=(per==4),allow_vv_from=vv)
        hg[0]+=18
        return st
    NUP=OPT.get('nup',12); NH1=OPT.get('nh1',15)
    for x in allb[:NUP]: a(x)
    a("s_barrier")
    for h in range(2):
        for x in areads(0,0,0,h,h): a(x)
    a(f"s_waitcnt vmcnt({NUP-4}) lgkmcnt(4)")
    stamp('b0')
    rest=allb[NUP:]
    ex={}
    for i,x in enumerate(rest[:36]): ex.setdefault(2*i+1 if (2*i+1)%4!=3 else 2*i,[]).append(x)
    print("h0",block(0,0,(0,1),lambda k,b: areads(0,1,0,k,b),[],[],ex,vwait=lambda h: f"b0_{h//2}" if h<18 and h%2==0 else None))
    stamp('h0')
    rest=rest[36:]
    ex={}
    for i,x in enumerate(rest[:NH1]):
        g=(70*i)//NH1+1
        ex.setdefault(g if g%4!=3 else g-1,[]).append(x)
    rest=rest[NH1:]
    print("h1",block(0,1,(0,1),lambda k,b: areads(1,0,0,k,b),gelu(0,(0,1),False,2),[],ex,bar=""))
    E("@W:b1_0")
    stamp('loop')
    PACE=OPT.get('pace',10)
    def cs(st):
        L=[]
        for f in range(4):
            kp=PORD[st]+9*(f&1); v = VL if kp<4 else VOF-1+kp//4
            for sg in range(2):
                L.append((None,f"buffer_load_dwordx4 {breg2((st*4+f)*2+sg)}, v{v}, {WS}, s{sHL+2*(f>>1)+sg} offen offset:{(kp%4)*1024} sc1 ; c{st}"))
        return L
    def dma2(st):
        return [(f"s_add_u32 m0, s{sLW}, {((st+2)%4)*SLAB+i*1024}", f"buffer_load_dwordx4 v{VDM[i]}, s[{sWD}:{sWD+3}], s{sDM+st} offen lds ; w{st}") for i in range(9)]
    sZ=sY
    a(f"s_mov_b32 s{sZ}, 0")
    if OPT.get('nob2'):
        for sl in range(4): a(f"s_mov_b32 s{sHL+sl}, 0x7ff00000")
    if OPT.get('now2'): a(f"s_mov_b32 s{sWW}, 0x7ff00000")
    def check(lb,need):
        slow.append((lb,VPB,sFA,need))
        return notready(need), [f"s_cbranch_vccnz {name}_{lb}", f"{name}_{lb}b:"]
    for m in range(1,5):
        stage=m&1; last=(m==4)
        vms=[]; ex0={}; clr=[]
        if m==1:
            vms+=[(None,x,3*i) for i,x in enumerate(rest)]
            g0=3*len(rest)+20
            if OPT.get('pfl',1)==1:
                vms+=[(None,f"buffer_load_dword v{VJ}, v149, s[{sWG}:{sWG+3}], 0 offen",g0-16),(None,f"buffer_load_dword v{VJ}, v149, s[{sWU}:{sWU+3}], 0 offen",g0-12)]
            vms+=[(p,x,g0+((214-g0)*i)//17) for i,(p,x) in enumerate(dma(0,"d2"))]
        elif not last: vms+=[(p,x,PACE*i) for i,(p,x) in enumerate(dma(stage^1,f"d{m+1}"))]
        else:
            clr=[[Op(f"v_mov_b32 v{VDM[i]}, v{VDT+i}","V")] for i in range(9)]
            for st in range(9): ex0[2*st]=[f"s_add_u32 s{sDM+st}, s{sWW}, {PORD[st]*32*1152}"]
            vms+=[(p,x,20+int(OPT.get('wp',7)*i)) for i,(p,x) in enumerate(dma2(0)+dma2(1))]
        if m<=3:
            if OPT.get('pft',0) and m>=2: vms.append((None,f"buffer_load_dword v{VJ}, v159, {WS}, s{sPO} offen offset:{(m-2)*128}",vms[-1][2]+4))
            if OPT.get('pfr',1) and m<=2:
                for sr in (sWG,sWU): vms.append((None,f"buffer_load_dword v{VJ}, v146, s[{sr}:{sr+3}], 0 offen offset:{64*(m+1)}",vms[-1][2]+3))
            if OPT.get('pfw',1): vms.append((None,f"buffer_load_dword v{VJ}, v{VPF}, s[{sWD}:{sWD+3}], s{sZ} offen",vms[-1][2]+4))
        v0=[v for v in vms if v[2]<144]; v1=[(p,x,g-144) for p,x,g in vms if g>=144]
        DLY=OPT.get('dly',0)
        HPo=(128,160)[(m-1)&1] if DLY else HP; HPn=(128,160)[m&1] if DLY else HP
        if DLY:
            for q_,sl in enumerate((0,1) if m==1 else (0,1,2,3)):
                v1.append((None,f"buffer_store_dwordx4 v[{HPo+sl*4}:{HPo+sl*4+3}], v{VH}, {WS}, s{sHS+sl} offen sc1 ; hst",DLY+OPT.get('dls',8)*q_))
            v1.sort(key=lambda x:x[2])
        s0=block(stage,0,(0,1,2,3),lambda k,b: areads(stage,1,0,k,b),clr+gelu(1,(0,1) if m==1 else (0,1,2,3),not DLY,2,HPo),v0,ex0,
                 vwait=(lambda h: f"b1_{h//2}" if h<18 and h%2==0 else None) if m==1 else None, vv=100 if last else None)
        stamp(f'm{m}')
        ex={}
        if m==1:
            ex[0]=[f"s_lshl_b32 s{sT1}, s{sKPF}, 10"]; upd=[Op(f"v_add_u32 v{VH}, s{sT1}, v{VL}","V",earliest=2 if not DLY else 136)]
        else: upd=[Op(f"v_add_u32 v{VH}, 0x400, v{VH}","V",earliest=2 if not DLY else 136)]
        if not last:
            nx=lambda k,b: areads(stage^1,0,0,k,b)
            s1=block(stage,1,(0,1,2,3),nx,[upd]+gelu(0,(0,1,2,3),False,2,HPn),v1,ex,bar=f"d{m+1}")
            a(f"v_add_u32 v{VD}, 64, v{VD}")
            a(f"s_add_u32 s{sZ}, s{sZ}, 0x6c000")
            for x in flagstore(F4,m): a(x)
            if m<3: stamp(f'it{m-1}')
            else: stamp('last')
        else:
            nx=lambda k,b: areads2(0,k,b)
            ck,br=check("sl3",3)
            ex[9]=[f"buffer_load_dword v{VP}, v{VPB}, {WS}, s{sFA} offen sc1 ; p3"]
            ex[38]=["@W:p3"]+ck
            ex[40]=br+flagstore(F4,4)
            k_=0
            for st in range(OPT.get('nc',2)):
                for x in cs(st):
                    v1.append(x+(max(41+int(k_*OPT.get('cp',5.5)),(st+1)*16),)); k_+=1
            s1=block(stage,1,(0,1,2,3),nx,[upd]+gelu(0,(0,1,2,3),False,2,HPn),sorted(v1,key=lambda x:x[2]),ex,bar="w1",vv=20)
            a(f"v_mov_b32 v2, s{sTAG}")
            VTG=2
        print("full",m,s0,s1)
    tail=gelu(1,(0,1,2,3),True,2)
    E("@W:c0 lgkmcnt(8)")
    stamp('g2')
    ND=OPT.get('nd',3)
    groups=[(st,d) for st in range(9-ND) for d in range(9)]
    oth=[8,6,7,4,5,2,3]
    groups+=[(st,d) for st in range(9-ND,9) for d in oth]
    groups+=[(st,d) for d in (0,1) for st in range(9-ND,9)]
    assert len(groups)==81 and len(set(groups))==81
    first={}; lastg={}
    for gi,(st,d) in enumerate(groups): first.setdefault(st,gi); lastg[d]=gi
    mf=[]; reads={}; sc={}
    def addsc(g,l): sc.setdefault(g,[]).extend(l)
    for gi,(st,d) in enumerate(groups):
        buf=(hg[0]+gi)%3; base=len(mf)
        for sg in range(2):
            acc=ACC2[d*2+sg]
            for f in range(4):
                A_=abuf2(buf,f)
                c="0" if (st==0 and f==0) else f"v[{acc}:{acc+3}]"
                mf.append(f"v_mfma_f32_16x16x32_bf16 v[{acc}:{acc+3}], v[{A_}:{A_+3}], {breg2((st*4+f)*2+sg)}, {c}")
        rl=areads2(*groups[gi+2],(hg[0]+gi+2)%3) if gi+2<81 else []
        for q,x in enumerate(rl): reads[base+q]=x
        nout=7 if rl else 0
        w=[f"s_waitcnt lgkmcnt({nout})"]
        for s2 in range(1,9):
            if s2>=2 and first[s2]==gi+3: w=[f"@W:w{s2} lgkmcnt({nout})","s_barrier"]
        for s2 in range(1,9):
            if first[s2]==gi+1: addsc(base+5,[f"@W:c{s2}"])
        addsc(base+7,w)
    bar={s2:(first[s2]-3)*8+8 for s2 in range(2,8)}
    P=OPT.get('g2p',4.0); NC=OPT.get('nc',2)
    seq=([(cs(1),0)] if NC<=1 else [])+[(dma2(2),0)]+([(cs(2),0)] if NC<=2 else [])
    seq+=[(dma2(3),0),(cs(3),0),(dma2(4),bar[2]),(cs(4),0),(dma2(5),bar[3]),(cs(5),"p4"),(dma2(6),bar[4]),(cs(6),0),(dma2(7),bar[5]),(cs(7),"p5"),(dma2(8),bar[6]),(cs(8),0)]
    ev=[]; g=0.0
    for L,e in seq:
        if e=="p4": G4=(int(g)//2)*2; g=G4+1
        elif e=="p5": G5=(int(g)//2)*2; g=G5+1
        else: g=max(g,e)
        for x in L:
            ev.append(x+(int(g),)); g+=P
    print("g2 plan",bar,G4,G5,g,first)
    for G,k,lb in ((G4,4,"sl4"),(G5,5,"sl5")):
        ck,br=check(lb,k)
        addsc(G-44,[f"buffer_load_dword v{VP}, v{VPB}, {WS}, s{sFA} offen sc1 ; p{k}"])
        addsc(G-2,[f"@W:p{k}"]+ck); addsc(G,br)
    GF5=OPT.get('gf5',230)
    addsc(GF5,["@W:hst"]+flagstore(F4,5))
    XR=128; GBr=216; RC=[224,240]
    ep=[]; o=ep.append
    o(f"s_mov_b32 s{sQO}, s{sOUT}"); o(f"s_and_b32 s{sQO+1}, s{sOUT+1}, 0xffff")
    o("v_and_b32 v22, 63, v0"); o("v_and_b32 v17, 15, v22"); o("v_lshrrev_b32 v18, 4, v22")
    o("v_lshlrev_b32 v19, 7, v18"); o("v_lshl_add_u32 v19, v17, 3, v19")
    o("v_lshlrev_b32 v20, 4, v18")
    o(f"s_lshl_b32 s{sT0}, s{sKH}, 4"); o(f"v_add_u32 v21, s{sT0}, v17")
    o("v_mul_u32_u24 v21, 1152, v21"); o("v_lshl_add_u32 v21, v18, 3, v21")
    o(f"s_mul_i32 s{sH2}, s{sKH}, 18432"); o(f"s_mul_i32 s{sT0}, s{sDS}, 4608"); o(f"s_add_u32 s{sH2}, s{sH2}, s{sT0}"); o(f"s_add_u32 s{sH2}, s{sH2}, {X1}")
    o(f"s_add_u32 s{sY}, s{sH2}, 4096"); o(f"s_add_u32 s{sY+1}, s{sY}, 18432")
    o(f"s_lshl_b32 s{sT0}, s{sKQ}, 10"); o(f"s_add_u32 s{sH2}, s{sH2}, s{sT0}"); o(f"s_add_u32 s{sH2+1}, s{sH2}, 18432")
    o(f"s_mul_i32 s{sH2+2}, s{sDS}, 576"); o(f"s_add_u32 s{sH2+2}, s{sH2+2}, {MODF+5*2304}"); o(f"s_lshl_b32 s{sT0}, s{sKQ}, 7"); o(f"s_add_u32 s{sH2+3}, s{sH2+2}, s{sT0}")
    o(f"s_mul_i32 s{sRB}, s{sDS}, 288"); o(f"s_lshl_b32 s{sT0}, s{sKQ}, 6"); o(f"s_add_u32 s{sG}, s{sRB}, s{sT0}")
    o(f"s_xor_b32 s{sRH}, s{sW}, s{sKQ}")
    for p in range(1,4):
        o(f"s_xor_b32 s{sT0}, s2, {2*p}"); o(f"s_lshl_b32 s{sT0}, s{sT0}, 2"); o(f"s_add_u32 s{sT0}, s{sT0}, s{sW}")
        o(f"s_mul_i32 s{sT0}, s{sT0}, {PSTR}"); o(f"s_add_u32 s{sHS+p}, s{sT0}, {PART+(p-1)*4096}")
        o(f"s_add_u32 s{sX+p}, s{sPO}, {(p-1)*4096}"); o(f"s_cmp_eq_u32 s{sRH}, {p}\ns_cselect_b32 s{sX+4+p}, s{sX+p}, 0x7ff00000")
    for q in range(8): o(f"v_mov_b32 v{RC[q>>2]+4*(q&3)+3}, s{sTAG}")
    for d in range(2):
        for sg in range(2): o(f"buffer_load_dwordx2 {pr(XR+4*d+2*sg)}, v19, {WS}, s{sH2+sg} offen offset:{512*d} sc1")
    for sg in range(2): o(f"buffer_load_dwordx2 {pr(XR+8+2*sg)}, v19, {WS}, s{sY+sg} offen sc1")
    for d in range(2): o(f"buffer_load_dwordx4 v[{GBr+4*d}:{GBr+4*d+3}], v20, {WS}, s{sH2+3} offen offset:{64*d} sc1")
    o(f"buffer_load_dwordx4 v[140:143], v20, {WS}, s{sH2+2} offen offset:512 sc1")
    GE=OPT.get('ge',GF5+10)
    prev=None; chain=[]
    sg_=GE
    for x in ep:
        k={"S":"S","V":"V","M":"D","T":"T"}[kind_of(x)]
        if k=="S":
            while sg_%8 in (5,7) or sg_ in sc: sg_+=1
            addsc(sg_,[x]); sg_+=1
        else:
            op=Op(x,k,[prev] if prev else [],earliest=sg_+1 if k!="D" else max(sg_+1,int(g)+4)); chain.append([op]); prev=op
            sg_+=2 if k!="D" else 4
    slot=lambda d: 4*(d//3)+d%3
    T8=[28,29,30,31]
    e8=(lastg[8]+1)*8+2
    c8=[Op(f"v_cvt_pk_bf16_f32 v{T8[2*sg+z]}, v{ACC2[16+sg]+2*z}, v{ACC2[16+sg]+2*z+1}","V",[prev],earliest=e8) for sg in range(2) for z in range(2)]
    chain+=[[x] for x in c8]
    lastst=None
    for n,p in enumerate((3,2,1)):
        R=RC[n&1]; ops=[]
        for dd in range(2):
            d=2*p+dd
            for sg in range(2):
                for z in range(2):
                    ops.append(Op(f"v_cvt_pk_bf16_f32 v{R+slot(4*dd+2*sg+z)}, v{ACC2[d*2+sg]+2*z}, v{ACC2[d*2+sg]+2*z+1}","V",[lastst[n-2]] if n>=2 else [prev],earliest=(lastg[d]+1)*8+2))
        for z in range(4): ops.append(Op(f"v_mov_b32 v{R+slot(8+z)}, v{T8[z]}","V",[c8[z]]+([lastst[n-2]] if n>=2 else [])))
        sts=[]
        for c in range(4):
            deps=[x for i_,x in enumerate(ops) if i_//3==c]+sts[-1:]
            sts.append(Op(f"buffer_store_dwordx4 v[{R+4*c}:{R+4*c+3}], v{VL}, {WS}, s{sX+p if c<3 else sX+4+p} offen offset:{1024*c} sc1","D",deps))
        lastst=(lastst or [])+[sts[-1]]
        chain+=[[x] for x in ops+sts]
    for n_ in SP:
        if n_.startswith("G") and A.STAMP: addsc(int(n_[1:]),[a.stamp_txt(SP.index(n_))])
    AB=OPT.get('ab','')
    if 'p' in AB:
        for g_ in list(sc): sc[g_]=[x for x in sc[g_] if not ("; p4" in x or "; p5" in x or "@W:p" in x or "v_cmp" in x or "vccnz" in x)]
    if 'w' in AB:
        for g_ in list(sc): sc[g_]=[re.sub(r"@W:\w+ ","s_waitcnt ",x) if " lgkm" in x else x for x in sc[g_] if not re.fullmatch(r"@W:\w+",x)]
    if 'b' in AB:
        for g_ in list(sc): sc[g_]=[x for x in sc[g_] if x!="s_barrier"]
    if 'v' in AB: ev=[]
    if 's' in AB:
        for ch in chain:
            if "buffer_store" in ch[0].fmt: ch[0].fmt="s_nop 0"
    r=schedule(E,mf,reads,sc,sorted(ev,key=lambda x:x[2]),tail+chain,TEMPS[:8],allow_rt=True,allow_rd=True)
    print("g2",r, "tail done", max(o_.gap for ch in tail for o_ in ch), "setup done", prev.gap, "stores", [x.gap for x in lastst])
    assert max(o_.gap for ch in tail for o_ in ch)<GF5 and r['left']==0
    stamp('g2end')
    a(f"s_mov_b32 s{sT2}, 0xffff0000")
    a(f"s_cmp_eq_u32 s{sRH}, 0")
    a(f"s_cbranch_scc1 {name}_own8")
    def fin(own8,lb):
        NCH=4 if own8 else 3
        IN=96
        quads=list(range(32,64,4))+list(range(96,112,4))
        regs=[]; ld=[]; tags=[]
        for p in range(1,4):
            qs=quads[NCH*(p-1):NCH*p]
            for c in range(NCH): ld.append(f"buffer_load_dwordx4 v[{qs[c]}:{qs[c]+3}], v{VL}, {WS}, s{sHS+p} offen offset:{1024*c} sc1")
            regs.append([qs[d//3]+d%3 for d in range(3*NCH)]); tags+=[q+3 for q in qs]
        ck=[f"v_min3_u32 v17, v{tags[0]}, v{tags[1]}, v{tags[2]}",f"v_max3_u32 v18, v{tags[0]}, v{tags[1]}, v{tags[2]}"]
        for i in range(3,len(tags),2):
            x,y=tags[i],tags[min(i+1,len(tags)-1)]
            ck+=[f"v_min3_u32 v17, v17, v{x}, v{y}",f"v_max3_u32 v18, v18, v{x}, v{y}"]
        ck+=[f"v_xor_b32 v17, s{sTAG}, v17",f"v_xor_b32 v18, s{sTAG}, v18","v_or_b32 v17, v17, v18","v_cmp_ne_u32 vcc, 0, v17"]
        spin(lb,ld,ck)
        stamp('f5')
        units=[(d,sg) for d in ((0,1,8) if own8 else (0,1)) for sg in range(2)]
        tmp=[152+4*u for u in range(6)]
        for p in range(3):
            for u,(d,sg) in enumerate(units):
                k=ACC2[d*2+sg]; p0,p1=regs[p][2*u],regs[p][2*u+1]; t=tmp[u]
                a(f"v_lshlrev_b32 v{t}, 16, v{p0}"); a(f"v_and_b32 v{t+1}, s{sT2}, v{p0}")
                a(f"v_lshlrev_b32 v{t+2}, 16, v{p1}"); a(f"v_and_b32 v{t+3}, s{sT2}, v{p1}")
                a(f"v_pk_add_f32 {pr(k)}, {pr(k)}, {pr(t)}"); a(f"v_pk_add_f32 {pr(k+2)}, {pr(k+2)}, {pr(t+2)}")
        a(f"v_add_u32 v22, {16*1152}, v21")
        for u,(d,sg) in enumerate(units):
            k=ACC2[d*2+sg]; t=tmp[u]; x=XR+2*u; gb=GBr+4*d if d<2 else 140
            a(f"v_lshlrev_b32 v{t}, 16, v{x}"); a(f"v_and_b32 v{t+1}, s{sT2}, v{x}")
            a(f"v_lshlrev_b32 v{t+2}, 16, v{x+1}"); a(f"v_and_b32 v{t+3}, s{sT2}, v{x+1}")
            a(f"v_pk_fma_f32 {pr(t)}, {pr(k)}, {pr(gb)}, {pr(t)}"); a(f"v_pk_fma_f32 {pr(t+2)}, {pr(k+2)}, {pr(gb+2)}, {pr(t+2)}")
            a(f"v_cvt_pk_bf16_f32 v{t}, v{t}, v{t+1}"); a(f"v_cvt_pk_bf16_f32 v{t+1}, v{t+2}, v{t+3}")
            so,off=(sG,32*d) if d<2 else (sRB,256)
            a(f"buffer_store_dwordx2 {pr(t)}, v{21+sg}, s[{sQO}:{sQO+3}], s{so} offen offset:{off} {OPT.get('ost','sc1')}")
        a.stamp_flush(len(SP), 16)
        a("s_endpgm")
    fin(False,f"{name}_p5a")
    a.label(f"{name}_own8")
    fin(True,f"{name}_p5b")
    for lb,va,sa,need in slow:
        a.label(f"{name}_{lb}")
        spin(f"{name}_{lb}l",[f"buffer_load_dword v{VP}, v{va}, {WS}, s{sa} offen sc1"],notready(need),back=f"{name}_{lb}b",sleep=1 if lb in("slm","slo") else 0)
    a.label(f"{name}_end")
    a("s_endpgm")
    return kernel_desc(name, 512, 256, 86)
```

```python
import sys, json
from asmlib import *
from hazard import fix, lint
import ks
def build1(path, verbose=False):
    a=A(); A.kidx=0
    d=ks.kf(a,KN)
    lint(a.l)
    vb=[]; lines,n=fix(a.l,vb)
    print(path,"instr",len(lines),"hazard nops",n)
    if verbose:
        for x in vb: print("   ",x)
    open(path,"w").write(finish([f"@launch grid=(256,1,1) block=(256,1,1) lds={ks.KS_LDS}"], "\n".join(lines)+"\n", [d]))
def variants(V, prefix="f5"):
    for i,o in enumerate(V):
        sv=dict(ks.OPT); ks.OPT.update(o)
        A.STAMP="sp" in o; A.CYC=bool(o.get("cyc")); A.DIAG=o.get("diag")
        build1(f"{prefix}_x{i+1}.s")
        ks.OPT.clear(); ks.OPT.update(sv)
if __name__=="__main__":
    build1("f5.s", verbose=len(sys.argv)>1)
    variants(json.loads(open("variants.json").read()))
```

```python
from asmlib import *
from gen import build
def fl(a,name):
    kernel_begin(a,name)
    a("s_cmp_ge_u32 s2, 2048"); a(f"s_cbranch_scc1 {name}_end")
    a(f"s_load_dwordx2 s[12:13], s[0:1], {KA['ws']}")
    a("v_lshlrev_b32 v1, 4, v0"); a("s_lshl_b32 s8, s2, 18")
    a("s_waitcnt lgkmcnt(0)")
    a("s_and_b32 s13, s13, 0xffff"); a("s_mov_b32 s14, 0x20000000"); a("s_mov_b32 s15, 0x00020000")
    for i in range(64):
        a(f"buffer_load_dwordx4 v[{4+4*(i%8)}:{7+4*(i%8)}], v1, s[12:15], s8 offen"); a("s_add_u32 s8, s8, 4096")
        if i>=8: a("s_waitcnt vmcnt(7)")
    a("s_waitcnt vmcnt(0)")
    a.label(f"{name}_end"); a("s_endpgm")
    return kernel_desc(name,40,40,24)
build([(fl,"fl_kernel",2048,256,0)],"fl.s")
```

```python
from asmlib import *
from gen import build
import json
A.STAMP=True; A.CYC=True
V=[((0,3,5,7),0),((0,3,5,7),3),((0,3,5,7),4),((0,3,5,7),5)]
json.dump(V,open("mb13.json","w"))
def mk(lines,mode):
    def fn(a,name):
        kernel_begin(a,name)
        a("s_cmp_ge_u32 s2, 256"); a(f"s_cbranch_scc1 {name}_end")
        a(f"s_load_dwordx4 s[12:15], s[0:1], {KA['wg']}")
        a("v_lshrrev_b32 v1, 6, v0"); a("s_nop 0"); a("v_readfirstlane_b32 s30, v1")
        a("s_and_b32 s25, s2, 7"); a("s_bfe_u32 s26, s2, 0x20003")
        a(f"s_mov_b32 s27, {lines[0]}")
        for m in range(1,4): a(f"s_cmp_eq_u32 s26, {m}"); a(f"s_cselect_b32 s27, {lines[m]}, s27")
        a("s_mul_i32 s25, s25, 9"); a("s_add_u32 s27, s27, s25"); a("s_lshl_b32 s27, s27, 7")
        a("v_and_b32 v2, 63, v0")
        if mode==2:
            a("v_lshlrev_b32 v3, 4, v2"); a("s_mul_i32 s27, s27, 288"); a("s_mul_i32 s28, s30, 9216"); a("s_add_u32 s27, s27, s28"); a("v_add_u32 v3, s27, v3")
        else:
            a("v_lshrrev_b32 v3, 2, v2"); a("s_mul_i32 s28, s30, 144"); a("v_add_u32 v3, s28, v3"); a("v_mul_u32_u24 v3, 9216, v3")
            a("v_and_b32 v2, 3, v2"); a("v_lshl_add_u32 v3, v2, 4, v3"); a("v_add_u32 v3, s27, v3")
        a("s_waitcnt lgkmcnt(0)")
        a("s_mov_b32 s16, s14"); a("s_and_b32 s17, s15, 0xffff"); a(f"s_mov_b32 s18, {SZ['wu']}"); a("s_mov_b32 s19, 0x00020000")
        a("s_and_b32 s13, s13, 0xffff"); a(f"s_mov_b32 s14, {SZ['wg']}"); a("s_mov_b32 s15, 0x00020000")
        a("s_lshl_b32 m0, s30, 10")
        seq=[(sb,i) for sb in range(2) for i in range(9)] if mode!=1 else [(sb,i) for i in range(9) for sb in range(2)]
        for rep in range(5):
            if rep==1: a("s_waitcnt vmcnt(0)"); a("s_barrier"); a.stamp(0,True)
            for sb,i in seq:
                a(f"s_mov_b32 s20, {i*16*9216 if mode!=2 else i*1024}")
                fl="sc1" if mode in (0,5) else ""
                a(f"buffer_load_dwordx4 v3, s[{12+4*sb}:{15+4*sb}], s20 offen {fl} lds")
                if mode>=4: a(f"buffer_load_dwordx4 v3, s[{12+4*sb}:{15+4*sb}], s20 offen offset:64 {fl} lds")
                a("s_waitcnt vmcnt(12)")
        a.stamp_flush(1,8)
        a.label(f"{name}_end"); a("s_endpgm")
        return kernel_desc(name,16,16)
    return fn
build([(mk(*v),f"m{i}_kernel",256,256,81920) for i,v in enumerate(V)],"mb13.s")
```
